```python
import torch

def _softmax(x, axis=-1):
    return torch.softmax(x, dim=axis)

def _gelu(x):
    return torch.nn.functional.gelu(x, approximate='tanh')

def _silu(x):
    return torch.nn.functional.silu(x)

def _sigmoid(x):
    return torch.sigmoid(x)

def _layernorm(x, axis=-1, eps=1e-05):
    m = x.mean(dim=axis, keepdim=True)
    v = x.var(dim=axis, keepdim=True, unbiased=False)
    return (x - m) / torch.sqrt(v + eps)

def _scatter_add(tgt, idx, src, axis=0):
    return tgt.clone().index_add_(axis, idx, src)

def _segment_sum(src, seg, n):
    out = torch.zeros((n,) + src.shape[1:], dtype=src.dtype)
    return out.index_add_(0, seg, src)

def _pad(x, pw):
    flat = tuple((v for pair in reversed(pw) for v in pair))
    return torch.nn.functional.pad(x, flat)
kernel_name = 'sequential_preLN__memory_aug_recurrent_mem_tr__glu_gated_bilinear__prompt'

def setup_inputs():

    _w = lambda a: (lambda t: t.to(torch.bfloat16) if t.is_floating_point() else t)(torch.as_tensor(a))

    def _A_setup():
        B, S, Dm = (1, 2048, 512)
        H, Dh = (32, 128)
        M, seg = (8, 32)
        seg = min(seg, S)
        S = S // seg * seg
        return {'x': _w((lambda *s: torch.randn(*s, dtype=torch.bfloat16) * 0.05)(B, S, Dm)), 'mem0': _w((lambda *s: torch.randn(*s, dtype=torch.bfloat16) * 0.2)(B, M, Dm)), 'Wq': _w((lambda *s: torch.randn(*s, dtype=torch.bfloat16) * 1.6)(Dm, H, Dh) * Dm ** (-0.5)), 'Wk': _w((lambda *s: torch.randn(*s, dtype=torch.bfloat16) * 1.6)(Dm, H, Dh) * Dm ** (-0.5)), 'Wv': _w((lambda *s: torch.randn(*s, dtype=torch.bfloat16) * 0.2)(Dm, H, Dh) * Dm ** (-0.5)), 'Wo': _w((lambda *s: torch.randn(*s, dtype=torch.bfloat16) * 0.2)(H, Dh, Dm) * (H * Dh) ** (-0.5)), 'seg_len': seg}
    _A_in = _A_setup()

    def _B_setup():
        B, S, D, F = (1, 2048, 512, 1792)
        return {'x': _w((lambda *s: torch.randn(*s, dtype=torch.bfloat16) * 0.05)(B, S, D)), 'w_gate': _w((lambda *s: torch.randn(*s, dtype=torch.bfloat16) * 0.2)(D, F) * D ** (-0.5)), 'w_up': _w((lambda *s: torch.randn(*s, dtype=torch.bfloat16) * 0.2)(D, F) * D ** (-0.5)), 'w_down': _w((lambda *s: torch.randn(*s, dtype=torch.bfloat16) * 0.2)(F, D) * F ** (-0.5))}
    _B_in = _B_setup()
    return {'A_x': _A_in['x'], 'A_mem0': _A_in['mem0'], 'A_Wq': _A_in['Wq'], 'A_Wk': _A_in['Wk'], 'A_Wv': _A_in['Wv'], 'A_Wo': _A_in['Wo'], 'A_seg_len': _A_in['seg_len'], 'B_x': _B_in['x'], 'B_w_gate': _B_in['w_gate'], 'B_w_up': _B_in['w_up'], 'B_w_down': _B_in['w_down']}

def reference(A_x, A_mem0, A_Wq, A_Wk, A_Wv, A_Wo, A_seg_len, B_x, B_w_gate, B_w_up, B_w_down):

    def _A_ref(x, mem0, Wq, Wk, Wv, Wo, seg_len):
        B, S, Dm = x.shape
        H, Dh = (Wq.shape[1], Wq.shape[2])
        M = mem0.shape[1]
        scale = Dh ** (-0.5)
        n_seg = S // seg_len
        L = M + seg_len
        idx = torch.arange(L)
        mask = (idx[:, None] < M) | (idx[:, None] >= idx[None, :])
        mem = mem0
        outs = []
        for s in range(n_seg):
            xs = x[:, s * seg_len:(s + 1) * seg_len, :].clone()
            h = torch.concatenate([mem, xs], axis=1)
            q = torch.einsum('btd,dhe->bhte', h, Wq)
            k = torch.einsum('btd,dhe->bhte', h, Wk)
            v = torch.einsum('btd,dhe->bhte', h, Wv)
            scores = torch.einsum('bhqe,bhke->bhqk', q, k) * scale
            scores = torch.where(mask[None, None], scores, -1000000000.0)
            p = _softmax(scores, axis=-1)
            o = torch.einsum('bhqk,bhke->bhqe', p, v)
            o = torch.einsum('bhte,hed->btd', o, Wo)
            mem = o[:, :M, :].clone()
            outs.append(o[:, M:, :])
        return torch.concatenate(outs, axis=1)

    def _B_ref(x, w_gate, w_up, w_down):
        g = torch.einsum('bsd,df->bsf', x, w_gate)
        u = torch.einsum('bsd,df->bsf', x, w_up)
        h = g * u
        return torch.einsum('bsf,fd->bsd', h, w_down)
    x = A_x
    h = x + _A_ref(_layernorm(x, axis=-1), A_mem0, A_Wq, A_Wk, A_Wv, A_Wo, A_seg_len)
    h2 = h + _B_ref(_layernorm(h, axis=-1), B_w_gate, B_w_up, B_w_down)
    return h2
```

```python
import sys

NAME = "sequential_preLN__memory_aug_recurrent_mem_tr__glu_gated_bilinear__prompt"
MB = 1 << 20
XN_F = 0
WQKV_F = 2 * MB
WO_F = 14 * MB
WGU_F = 18 * MB
WD_F = 22 * MB
Q_F = 24 * MB
K_F = 40 * MB
V_F = 56 * MB
KM_F = 72 * MB
VM_F = 80 * MB
O_F = 96 * MB
H_B = 112 * MB
ACT_F = 114 * MB
RS_B = 124 * MB
MEMN = 125 * MB
WS_BYTES = 256 * MB

KA_X, KA_MEM0, KA_WQ, KA_WK, KA_WV, KA_WO, KA_SEG, KA_BX, KA_WG, KA_WU, KA_WD, KA_OUT, KA_DBG, KA_WS = [8 * i for i in range(14)]


class A:
    def __init__(self):
        self.lines = []
        self.uid = 0

    def __call__(self, s):
        for l in s.strip("\n").split("\n"):
            self.lines.append("    " + l.strip())

    def label(self, name):
        self.lines.append(name + ":")

    def newlabel(self, p="L"):
        self.uid += 1
        return "%s_%d" % (p, self.uid)

    def nop(self, n):
        while n > 0:
            k = min(n, 16)
            self("s_nop %d" % (k - 1))
            n -= k

    def text(self):
        return "\n".join(self.lines) + "\n"


def srd(a, s, ptr_lo, nbytes):
    a("s_mov_b32 s%d, s%d" % (s, ptr_lo))
    a("s_and_b32 s%d, s%d, 0xffff" % (s + 1, ptr_lo + 1))
    a("s_mov_b32 s%d, %d" % (s + 2, nbytes))
    a("s_mov_b32 s%d, 0x00020000" % (s + 3))


def vr(b, n=1):
    return "v%d" % b if n == 1 else "v[%d:%d]" % (b, b + n - 1)


def ar(b, n=1):
    return "a%d" % b if n == 1 else "a[%d:%d]" % (b, b + n - 1)


def mfma(a, d, x, y, c):
    a("v_mfma_f32_16x16x32_bf16 %s, %s, %s, %s" % (d, x, y, c))


def kernel_begin(a, name):
    a.lines.append(".globl %s" % name)
    a.lines.append(".p2align 8")
    a.lines.append(".type %s,@function" % name)
    a.label(name)


def kd(name, vgpr, accum, sgpr=102):
    return """.amdhsa_kernel %s
  .amdhsa_next_free_vgpr %d
  .amdhsa_next_free_sgpr %d
  .amdhsa_accum_offset %d
  .amdhsa_group_segment_fixed_size 0
  .amdhsa_kernarg_size 112
  .amdhsa_user_sgpr_count 2
  .amdhsa_user_sgpr_kernarg_segment_ptr 1
  .amdhsa_system_sgpr_workgroup_id_x 1
.end_amdhsa_kernel
""" % (name, vgpr, sgpr, accum)


def lane_setup(a, vlane=1, vg=2, vr_=3, swave=3):
    a("v_lshrrev_b32 v%d, 6, v0" % vlane)
    a("s_nop 0")
    a("v_readfirstlane_b32 s%d, v%d" % (swave, vlane))
    a("v_and_b32 v%d, 63, v0" % vlane)
    a("v_lshrrev_b32 v%d, 4, v%d" % (vg, vlane))
    a("v_and_b32 v%d, 15, v%d" % (vr_, vlane))


def round_bf16(a, dst, src):
    a("v_cvt_pk_bf16_f32 v%d, v%d, v%d" % (dst, src, src))
    a("v_lshlrev_b32 v%d, 16, v%d" % (dst, dst))


def xlane_sum4(a, v, tmp, vaddr16, vaddr32):
    a("ds_bpermute_b32 v%d, v%d, v%d" % (tmp, vaddr16, v))
    a("s_waitcnt lgkmcnt(0)")
    a("v_add_f32 v%d, v%d, v%d" % (v, v, tmp))
    a("ds_bpermute_b32 v%d, v%d, v%d" % (tmp, vaddr32, v))
    a("s_waitcnt lgkmcnt(0)")
    a("v_add_f32 v%d, v%d, v%d" % (v, v, tmp))


def xlane_max4(a, v, tmp, vaddr16, vaddr32):
    a("ds_bpermute_b32 v%d, v%d, v%d" % (tmp, vaddr16, v))
    a("s_waitcnt lgkmcnt(0)")
    a("v_max_f32 v%d, v%d, v%d" % (v, v, tmp))
    a("ds_bpermute_b32 v%d, v%d, v%d" % (tmp, vaddr32, v))
    a("s_waitcnt lgkmcnt(0)")
    a("v_max_f32 v%d, v%d, v%d" % (v, v, tmp))


def layernorm_rows(a, raw, nk, f32, tmp, vaddr16, vaddr32):
    n = nk * 8
    t0, t1, t2, t3, t4, t5 = [tmp + i for i in range(6)]
    for i in range(nk * 4):
        a("v_lshlrev_b32 v%d, 16, v%d" % (f32 + 2 * i, raw + i))
        a("v_and_b32 v%d, 0xffff0000, v%d" % (f32 + 2 * i + 1, raw + i))
    a("v_add_f32 v%d, v%d, v%d" % (t0, f32, f32 + 1))
    for i in range(2, n):
        a("v_add_f32 v%d, v%d, v%d" % (t0, t0, f32 + i))
    xlane_sum4(a, t0, t1, vaddr16, vaddr32)
    a("v_mul_f32 v%d, 0x3b000000, v%d" % (t0, t0))
    a("v_mov_b32 v%d, 0" % t2)
    for i in range(n):
        a("v_sub_f32 v%d, v%d, v%d" % (t1, f32 + i, t0))
        a("v_fmac_f32 v%d, v%d, v%d" % (t2, t1, t1))
    xlane_sum4(a, t2, t1, vaddr16, vaddr32)
    a("v_mul_f32 v%d, 0x3b000000, v%d" % (t2, t2))
    round_bf16(a, t0, t0)
    round_bf16(a, t2, t2)
    a("v_add_f32 v%d, 0x3727c5ac, v%d" % (t2, t2))
    round_bf16(a, t2, t2)
    a("v_sqrt_f32 v%d, v%d" % (t2, t2))
    a("s_nop 0")
    round_bf16(a, t2, t2)
    a("v_rcp_f32 v%d, v%d" % (t3, t2))
    a("s_nop 0")
    a("v_fma_f32 v%d, -v%d, v%d, 2.0" % (t4, t2, t3))
    a("v_mul_f32 v%d, v%d, v%d" % (t3, t3, t4))
    for i in range(nk * 4):
        lo, hi = f32 + 2 * i, f32 + 2 * i + 1
        a("v_sub_f32 v%d, v%d, v%d" % (lo, lo, t0))
        a("v_sub_f32 v%d, v%d, v%d" % (hi, hi, t0))
        a("v_cvt_pk_bf16_f32 v%d, v%d, v%d" % (t4, lo, hi))
        a("v_lshlrev_b32 v%d, 16, v%d" % (lo, t4))
        a("v_and_b32 v%d, 0xffff0000, v%d" % (hi, t4))
        a("v_mul_f32 v%d, v%d, v%d" % (lo, lo, t3))
        a("v_mul_f32 v%d, v%d, v%d" % (hi, hi, t3))
        a("v_cvt_pk_bf16_f32 v%d, v%d, v%d" % (raw + i, lo, hi))


N_QKV = 12288
N_WO = 4096
N_GU = 3584
N_WD = 1792
N_W = N_QKV + N_WO + N_GU + N_WD
N_PREP = N_W + 128


def gen_prep(a):
    kernel_begin(a, "prep_kernel")
    a("s_load_dwordx4 s[4:7], s[0:1], %d" % KA_WQ)
    a("s_load_dwordx4 s[12:15], s[0:1], %d" % KA_WV)
    a("s_load_dwordx4 s[16:19], s[0:1], %d" % KA_WG)
    a("s_load_dwordx2 s[20:21], s[0:1], %d" % KA_WD)
    a("s_load_dwordx2 s[22:23], s[0:1], %d" % KA_WS)
    a("s_load_dwordx2 s[32:33], s[0:1], %d" % KA_X)
    lane_setup(a)
    a("s_lshl_b32 s31, s2, 2")
    a("s_add_u32 s31, s31, s3")
    a("s_waitcnt lgkmcnt(0)")
    srd(a, 40, 22, WS_BYTES)
    a("s_cmp_ge_u32 s31, %d" % N_PREP)
    a("s_cbranch_scc1 prep_end")
    a("s_cmp_ge_u32 s31, %d" % N_W)
    a("s_cbranch_scc1 prep_ln")
    a("s_cmp_ge_u32 s31, %d" % N_QKV)
    a("s_cbranch_scc1 prep_c1")
    a("s_lshr_b32 s34, s31, 12")
    a("s_mov_b64 s[24:25], s[4:5]")
    a("s_cmp_eq_u32 s34, 1")
    a("s_cselect_b64 s[24:25], s[6:7], s[24:25]")
    a("s_cmp_eq_u32 s34, 2")
    a("s_cselect_b64 s[24:25], s[12:13], s[24:25]")
    a("s_mov_b32 s26, %d" % (512 * 4096 * 2))
    a("s_mov_b32 s27, 8192")
    a("s_lshr_b32 s35, s31, 4")
    a("s_and_b32 s35, s35, 255")
    a("s_and_b32 s36, s31, 15")
    a("s_mov_b32 s29, 0")
    a("s_lshl_b32 s30, s31, 10")
    a("s_add_u32 s30, s30, %d" % WQKV_F)
    a("s_branch prep_go")
    a.label("prep_c1")
    a("s_cmp_ge_u32 s31, %d" % (N_QKV + N_WO))
    a("s_cbranch_scc1 prep_c2")
    a("s_sub_u32 s34, s31, %d" % N_QKV)
    a("s_mov_b64 s[24:25], s[14:15]")
    a("s_mov_b32 s26, %d" % (4096 * 512 * 2))
    a("s_mov_b32 s27, 1024")
    a("s_lshr_b32 s35, s34, 7")
    a("s_and_b32 s36, s34, 127")
    a("s_mov_b32 s29, 1")
    a("s_lshl_b32 s30, s34, 10")
    a("s_add_u32 s30, s30, %d" % WO_F)
    a("s_branch prep_go")
    a.label("prep_c2")
    a("s_cmp_ge_u32 s31, %d" % (N_QKV + N_WO + N_GU))
    a("s_cbranch_scc1 prep_c3")
    a("s_sub_u32 s34, s31, %d" % (N_QKV + N_WO))
    a("s_lshl_b32 s30, s34, 10")
    a("s_add_u32 s30, s30, %d" % WGU_F)
    a("s_mov_b64 s[24:25], s[16:17]")
    a("s_cmp_ge_u32 s34, 1792")
    a("s_cselect_b64 s[24:25], s[18:19], s[24:25]")
    a("s_cselect_b32 s37, 1792, 0")
    a("s_sub_u32 s34, s34, s37")
    a("s_mov_b32 s26, %d" % (512 * 1792 * 2))
    a("s_mov_b32 s27, 3584")
    a("s_lshr_b32 s35, s34, 4")
    a("s_and_b32 s36, s34, 15")
    a("s_mov_b32 s29, 0")
    a("s_branch prep_go")
    a.label("prep_c3")
    a("s_sub_u32 s34, s31, %d" % (N_QKV + N_WO + N_GU))
    a("s_lshl_b32 s30, s34, 10")
    a("s_add_u32 s30, s30, %d" % WD_F)
    a("s_mov_b64 s[24:25], s[20:21]")
    a("s_mov_b32 s26, %d" % (1792 * 512 * 2))
    a("s_mov_b32 s27, 1024")
    a("s_mul_hi_u32 s35, s34, %d" % ((1 << 32) // 56 + 1))
    a("s_mul_i32 s37, s35, 56")
    a("s_sub_u32 s36, s34, s37")
    a("s_mov_b32 s29, 1")
    a.label("prep_go")
    a("s_mul_i32 s28, s36, s27")
    a("s_lshl_b32 s28, s28, 5")
    a("s_lshl_b32 s37, s35, 5")
    a("s_add_u32 s28, s28, s37")
    a("s_mov_b32 s8, s24")
    a("s_and_b32 s9, s25, 0xffff")
    a("s_mov_b32 s10, s26")
    a("s_mov_b32 s11, 0x00020000")
    a("s_cmp_eq_u32 s29, 1")
    a("s_cselect_b32 s37, 2, 3")
    a("s_lshl_b32 s38, s27, s37")
    a("v_mul_lo_u32 v4, v2, s38")
    a("v_lshl_add_u32 v4, v3, 1, v4")
    a("s_cmp_eq_u32 s29, 1")
    a("s_cselect_b32 s39, 16, 4")
    a("s_mul_i32 s39, s39, s27")
    for idx in range(8):
        if idx == 0:
            a("s_mov_b32 s44, s28")
        elif idx == 4:
            a("s_add_u32 s48, s28, s39")
        else:
            a("s_add_u32 s%d, s%d, s27" % (44 + idx, 43 + idx))
    for idx in range(8):
        a("buffer_load_ushort v%d, v4, s[8:11], s%d offen" % (16 + idx, 44 + idx))
    a("v_lshlrev_b32 v5, 4, v1")
    a("s_waitcnt vmcnt(0)")
    for i in range(4):
        a("v_lshl_or_b32 v%d, v%d, 16, v%d" % (8 + i, 17 + 2 * i, 16 + 2 * i))
    a("buffer_store_dwordx4 v[8:11], v5, s[40:43], s30 offen")
    a("s_branch prep_end")
    a.label("prep_ln")
    a("s_sub_u32 s34, s31, %d" % N_W)
    srd(a, 8, 32, 2048 * 512 * 2)
    a("v_lshlrev_b32 v4, 10, v3")
    a("v_lshl_add_u32 v4, v2, 4, v4")
    a("s_lshl_b32 s35, s34, 14")
    for kk in range(16):
        a("buffer_load_dwordx4 %s, v4, s[8:11], s35 offen offset:%d" % (vr(16 + 4 * kk, 4), kk * 64))
    a("v_xor_b32 v5, 16, v1")
    a("v_lshlrev_b32 v5, 2, v5")
    a("v_xor_b32 v6, 32, v1")
    a("v_lshlrev_b32 v6, 2, v6")
    a("s_waitcnt vmcnt(0)")
    layernorm_rows(a, 16, 16, 96, 8, 5, 6)
    a("v_lshlrev_b32 v5, 4, v1")
    a("s_add_u32 s35, s35, %d" % XN_F)
    for kk in range(16):
        if kk % 4 == 0 and kk:
            a("s_add_u32 s35, s35, 4096")
        a("buffer_store_dwordx4 %s, v5, s[40:43], s35 offen offset:%d" % (vr(16 + 4 * kk, 4), (kk % 4) * 1024))
    a.label("prep_end")
    a("s_endpgm")
    return kd("prep_kernel", 224, 224)


ABUF = 32
BBUF = 96


def gemm_panel_core(a, swapped, vLds0, vLds1, vB, sB, srdB):
    def ldA(kk):
        buf = ABUF + (kk & 1) * 32
        for tt in range(8):
            off = tt * 16384 + kk * 1024
            base, o = (vLds0, off) if off < 65536 else (vLds1, off - 65536)
            a("ds_read_b128 %s, v%d offset:%d" % (vr(buf + 4 * tt, 4), base, o))

    def ldB(kk):
        buf = BBUF + (kk % 3) * 16
        if kk % 4 == 0 and kk:
            a("s_add_u32 s%d, s%d, 4096" % (sB, sB))
        for j in range(4):
            a("buffer_load_dwordx4 %s, v%d, s[%d:%d], s%d offen offset:%d" % (vr(buf + 4 * j, 4), vB + j, srdB, srdB + 3, sB, (kk % 4) * 1024))

    ldB(0)
    ldB(1)
    ldA(0)
    for kk in range(16):
        if kk + 2 < 16:
            ldB(kk + 2)
        if kk + 1 < 16:
            ldA(kk + 1)
        nv = 4 * min(2, 15 - kk)
        nl = 8 if kk + 1 < 16 else 0
        a("s_waitcnt vmcnt(%d) lgkmcnt(%d)" % (nv, nl))
        abuf = ABUF + (kk & 1) * 32
        bbuf = BBUF + (kk % 3) * 16
        for tt in range(8):
            for j in range(4):
                d = ar((tt * 4 + j) * 4, 4)
                c = "0" if kk == 0 else d
                x, y = vr(abuf + 4 * tt, 4), vr(bbuf + 4 * j, 4)
                if swapped:
                    mfma(a, d, x, y, c)
                else:
                    mfma(a, d, y, x, c)
    a.nop(10)


def read_acc_pack(a, dst, acc0, acc1):
    t = dst + 4
    for i in range(4):
        a("v_accvgpr_read_b32 v%d, a%d" % (t + i, acc0 + i))
        a("v_accvgpr_read_b32 v%d, a%d" % (t + 4 + i, acc1 + i))
    a("v_cvt_pk_bf16_f32 v%d, v%d, v%d" % (dst, t, t + 1))
    a("v_cvt_pk_bf16_f32 v%d, v%d, v%d" % (dst + 1, t + 2, t + 3))
    a("v_cvt_pk_bf16_f32 v%d, v%d, v%d" % (dst + 2, t + 4, t + 5))
    a("v_cvt_pk_bf16_f32 v%d, v%d, v%d" % (dst + 3, t + 6, t + 7))


def gen_qkv(a):
    kernel_begin(a, "qkv_kernel")
    a("s_cmp_ge_u32 s2, 256")
    a("s_cbranch_scc1 qkv_end")
    a("s_load_dwordx2 s[22:23], s[0:1], %d" % KA_WS)
    lane_setup(a)
    a("s_and_b32 s4, s2, 15")
    a("s_lshr_b32 s5, s2, 4")
    a("v_lshlrev_b32 v4, 4, v1")
    a("v_add_u32 v5, 0x10000, v4")
    a("s_waitcnt lgkmcnt(0)")
    srd(a, 40, 22, WS_BYTES)
    a("s_lshl_b32 s6, s4, 17")
    a("s_lshl_b32 s7, s3, 15")
    a("s_add_u32 s6, s6, s7")
    if XN_F:
        a("s_add_u32 s6, s6, %d" % XN_F)
    for c in range(32):
        a("s_add_u32 s8, s7, %d" % (c * 1024))
        a("s_mov_b32 m0, s8")
        a("s_add_u32 s9, s6, %d" % (c * 1024))
        a("buffer_load_dwordx4 v4, s[40:43], s9 offen lds")
    a("s_waitcnt vmcnt(0)")
    a("s_barrier")
    a("s_mov_b32 s10, 0")
    a.label("qkv_loop")
    a("s_mul_i32 s11, s5, 3")
    a("s_add_u32 s11, s11, s10")
    a("s_lshl_b32 s12, s11, 4")
    a("s_lshl_b32 s13, s3, 2")
    a("s_add_u32 s12, s12, s13")
    a("s_lshl_b32 s14, s12, 14")
    a("s_add_u32 s14, s14, %d" % WQKV_F)
    for j in range(4):
        a("v_add_u32 v%d, %d, v4" % (8 + j, j * 16384))
    a("s_lshr_b32 s15, s12, 3")
    a("s_and_b32 s15, s15, 31")
    a("s_and_b32 s16, s12, 7")
    a("s_cmp_ge_u32 s11, 32")
    a("s_cbranch_scc1 qkv_v")
    gemm_panel_core(a, False, 4, 5, 8, 14, 40)
    a("s_cmp_ge_u32 s11, 16")
    a("s_cselect_b32 s17, %d, 0" % (K_F - Q_F))
    a("s_add_u32 s17, s17, %d" % Q_F)
    a("s_lshl_b32 s18, s4, 20")
    a("s_add_u32 s17, s17, s18")
    a("s_lshl_b32 s18, s15, 13")
    a("s_add_u32 s17, s17, s18")
    a("s_lshl_b32 s18, s16, 10")
    a("s_add_u32 s17, s17, s18")
    for tt in range(8):
        for p in range(2):
            read_acc_pack(a, 16, (tt * 4 + 2 * p) * 4, (tt * 4 + 2 * p + 1) * 4)
            off = (tt // 2) * 262144 + p * 2048 + (tt % 2) * 1024
            a("s_add_u32 s18, s17, %d" % off)
            a("buffer_store_dwordx4 v[16:19], v4, s[40:43], s18 offen")
            a("s_nop 0")
    a("s_branch qkv_next")
    a.label("qkv_v")
    gemm_panel_core(a, True, 4, 5, 8, 14, 40)
    a("s_lshl_b32 s17, s4, 20")
    a("s_add_u32 s17, s17, %d" % V_F)
    a("s_lshl_b32 s18, s15, 13")
    a("s_add_u32 s17, s17, s18")
    a("s_lshl_b32 s18, s16, 10")
    a("s_add_u32 s17, s17, s18")
    for sg in range(4):
        for j in range(4):
            read_acc_pack(a, 16, ((2 * sg) * 4 + j) * 4, ((2 * sg + 1) * 4 + j) * 4)
            off = sg * 262144 + j * 1024
            a("s_add_u32 s18, s17, %d" % off)
            a("buffer_store_dwordx4 v[16:19], v4, s[40:43], s18 offen")
            a("s_nop 0")
    a.label("qkv_next")
    a("s_add_u32 s10, s10, 1")
    a("s_cmp_lt_u32 s10, 3")
    a("s_cbranch_scc1 qkv_loop")
    a.label("qkv_end")
    a("s_endpgm")
    return kd("qkv_kernel", 144 + 128, 144)


def softmax12(a, S, tmp, vaddr16, vaddr32, P):
    m, t, s = tmp, tmp + 1, tmp + 2
    a("v_max3_f32 v%d, v%d, v%d, v%d" % (m, S, S + 1, S + 2))
    for i in range(3, 12, 2):
        if i + 1 < 12:
            a("v_max3_f32 v%d, v%d, v%d, v%d" % (m, m, S + i, S + i + 1))
        else:
            a("v_max_f32 v%d, v%d, v%d" % (m, m, S + i))
    xlane_max4(a, m, t, vaddr16, vaddr32)
    for i in range(12):
        a("v_sub_f32 v%d, v%d, v%d" % (S + i, S + i, m))
        a("v_mul_f32 v%d, 0x3fb8aa3b, v%d" % (S + i, S + i))
        a("v_exp_f32 v%d, v%d" % (S + i, S + i))
    a("s_nop 0")
    a("v_add_f32 v%d, v%d, v%d" % (s, S, S + 1))
    for i in range(2, 12):
        a("v_add_f32 v%d, v%d, v%d" % (s, s, S + i))
    xlane_sum4(a, s, t, vaddr16, vaddr32)
    a("v_rcp_f32 v%d, v%d" % (t, s))
    a("s_nop 0")
    a("v_fma_f32 v%d, -v%d, v%d, 2.0" % (m, s, t))
    a("v_mul_f32 v%d, v%d, v%d" % (t, t, m))
    for i in range(12):
        a("v_mul_f32 v%d, v%d, v%d" % (S + i, S + i, t))
    for i in range(6):
        a("v_cvt_pk_bf16_f32 v%d, v%d, v%d" % (P + i, S + 2 * i, S + 2 * i + 1))


def scale_round(a, v, tmp):
    round_bf16(a, v, v)
    a("v_mul_f32 v%d, 0x3db504f3, v%d" % (v, v))
    round_bf16(a, v, v)


LDS_SC = 0
LDS_OB = 12288
LDS_WV = 16384
REC_LDS = LDS_WV + 131072
SCO = "sc0 sc1"


def gen_rec(a):
    kernel_begin(a, "rec_kernel")
    a("s_cmp_ge_u32 s2, 32")
    a("s_cbranch_scc1 rec_end")
    a("s_load_dwordx2 s[22:23], s[0:1], %d" % KA_WS)
    a("s_load_dwordx2 s[24:25], s[0:1], %d" % KA_MEM0)
    a("s_load_dwordx2 s[26:27], s[0:1], %d" % KA_DBG)
    lane_setup(a)
    a("v_lshlrev_b32 v4, 4, v1")
    a("s_waitcnt lgkmcnt(0)")
    srd(a, 40, 22, WS_BYTES)
    srd(a, 44, 24, 8192)
    srd(a, 48, 26, 256)
    a("s_add_u32 s52, s22, %d" % MEMN)
    a("s_addc_u32 s53, s23, 0")
    a("s_and_b32 s53, s53, 0xffff")
    a("s_mov_b32 s54, 8192")
    a("s_mov_b32 s55, 0x00020000")
    a("s_lshl_b32 s4, s2, 3")
    a("s_lshl_b32 s5, s3, 1")
    a("s_add_u32 s4, s4, s5")
    a("s_lshl_b32 s4, s4, 14")
    a("s_add_u32 s4, s4, %d" % WQKV_F)
    for m in range(2):
        for c in range(32):
            if c % 4 == 0:
                a("s_add_u32 s6, s4, %d" % (m * 256 * 16384 + c * 1024))
            a("buffer_load_dwordx4 %s, v4, s[40:43], s6 offen offset:%d" % (ar(m * 128 + c * 4, 4), (c % 4) * 1024))
    a("s_lshl_b32 s7, s3, 15")
    for c in range(32):
        a("s_add_u32 s8, s7, %d" % (LDS_WV + c * 1024))
        a("s_mov_b32 m0, s8")
        a("s_add_u32 s9, s4, %d" % (2 * 256 * 16384 + c * 1024))
        a("buffer_load_dwordx4 v4, s[40:43], s9 offen lds")
    a("s_lshl_b32 s6, s3, 20")
    a("s_lshl_b32 s7, s2, 12")
    a("s_add_u32 s6, s6, s7")
    a("s_add_u32 s6, s6, %d" % WO_F)
    for i in range(8):
        for sl in range(4):
            a("buffer_load_dwordx4 %s, v4, s[40:43], s6 offen offset:%d" % (vr(128 + (i * 4 + sl) * 4, 4), sl * 1024))
        if i < 7:
            a("s_add_u32 s6, s6, 131072")
    a("v_xor_b32 v5, 16, v1")
    a("v_lshlrev_b32 v5, 2, v5")
    a("v_xor_b32 v6, 32, v1")
    a("v_lshlrev_b32 v6, 2, v6")
    a("v_lshlrev_b32 v7, 10, v3")
    a("v_lshl_add_u32 v7, v2, 4, v7")
    a("s_lshl_b32 s8, s3, 15")
    a("s_add_u32 s8, s8, %d" % LDS_WV)
    a("v_add_u32 v8, s8, v4")
    a("v_mul_u32_u24 v9, 48, v1")
    a("s_mul_i32 s8, s3, 3072")
    a("v_add_u32 v10, s8, v9")
    a("s_lshl_b32 s8, s3, 10")
    a("v_add_u32 v11, s8, v4")
    a("v_lshlrev_b32 v12, 6, v3")
    a("v_lshl_add_u32 v12, v2, 4, v12")
    a("v_and_b32 v13, 31, v1")
    a("v_lshlrev_b32 v13, 2, v13")
    a("s_mov_b32 s20, 0")
    a("s_lshl_b32 s21, s2, 13")
    a("s_waitcnt vmcnt(0)")
    a("s_barrier")
    a.label("rec_loop")
    a("s_lshl_b32 s8, s20, 18")
    a("s_add_u32 s8, s8, s21")
    a("s_lshl_b32 s9, s3, 11")
    a("s_add_u32 s8, s8, s9")
    a("s_add_u32 s9, s8, %d" % K_F)
    a("buffer_load_dwordx4 v[16:19], v4, s[40:43], s9 offen")
    a("buffer_load_dwordx4 v[20:23], v4, s[40:43], s9 offen offset:1024")
    a("s_add_u32 s9, s8, %d" % V_F)
    a("buffer_load_dwordx4 v[24:27], v4, s[40:43], s9 offen")
    a("buffer_load_dwordx4 v[28:31], v4, s[40:43], s9 offen offset:1024")
    a("s_cmp_eq_u32 s20, 0")
    a("s_cbranch_scc0 rec_poll_ag")
    for kk in range(16):
        a("buffer_load_dwordx4 %s, v7, s[44:47], 0 offen offset:%d" % (vr(64 + 4 * kk, 4), kk * 64))
    a("s_branch rec_mem_done")
    a.label("rec_poll_ag")
    a("s_mov_b32 s10, 0")
    a.label("rec_poll_ag_l")
    a("buffer_load_dword v14, v13, s[48:51], 0 offen offset:128 %s" % SCO)
    a("s_add_u32 s10, s10, 1")
    a("s_waitcnt vmcnt(0)")
    a("v_cmp_le_u32 vcc, s20, v14")
    a("s_cmp_gt_u32 s10, 0x200000")
    a("s_cbranch_scc1 rec_end")
    a("s_cmp_eq_u64 vcc, exec")
    a("s_cbranch_scc0 rec_poll_ag_l")
    for kk in range(16):
        a("buffer_load_dwordx4 %s, v7, s[52:55], 0 offen offset:%d %s" % (vr(64 + 4 * kk, 4), kk * 64, SCO))
    a.label("rec_mem_done")
    for kk in range(16):
        a("s_waitcnt vmcnt(%d)" % (15 - kk))
        for m in range(2):
            for et in range(2):
                d = vr(32 + m * 8 + et * 4, 4)
                mfma(a, d, ar(m * 128 + (et * 16 + kk) * 4, 4), vr(64 + 4 * kk, 4), "0" if kk == 0 else d)
    for i in range(4):
        a("ds_read_b128 %s, v8 offset:%d" % (vr(48 + 4 * i, 4), i * 1024))
    a.nop(4)
    a("v_cvt_pk_bf16_f32 v32, v32, v33")
    a("v_cvt_pk_bf16_f32 v33, v34, v35")
    a("v_cvt_pk_bf16_f32 v34, v36, v37")
    a("v_cvt_pk_bf16_f32 v35, v38, v39")
    a("v_cvt_pk_bf16_f32 v36, v40, v41")
    a("v_cvt_pk_bf16_f32 v37, v42, v43")
    a("v_cvt_pk_bf16_f32 v38, v44, v45")
    a("v_cvt_pk_bf16_f32 v39, v46, v47")
    a("s_lshl_b32 s9, s20, 17")
    a("s_lshl_b32 s11, s2, 12")
    a("s_add_u32 s9, s9, s11")
    a("s_lshl_b32 s11, s3, 10")
    a("s_add_u32 s9, s9, s11")
    a("s_add_u32 s9, s9, %d" % KM_F)
    a("buffer_store_dwordx4 v[36:39], v4, s[40:43], s9 offen")
    mfma(a, vr(40, 4), vr(16, 4), vr(32, 4), "0")
    mfma(a, vr(44, 4), vr(20, 4), vr(32, 4), "0")
    mfma(a, vr(16, 4), vr(36, 4), vr(32, 4), "0")
    a.nop(8)
    a("ds_write_b128 v10, v[40:43] offset:%d" % LDS_SC)
    a("ds_write_b128 v10, v[44:47] offset:%d" % (LDS_SC + 16))
    a("ds_write_b128 v10, v[16:19] offset:%d" % (LDS_SC + 32))
    for c in range(32):
        et, kk = c // 16, c % 16
        buf = 48 + 4 * (c % 4)
        rem = min(3, 31 - c)
        a("s_waitcnt lgkmcnt(%d)" % rem)
        d = vr(32 + et * 4, 4)
        mfma(a, d, vr(64 + 4 * kk, 4), vr(buf, 4), "0" if kk == 0 else d)
        if c + 4 < 32:
            a("ds_read_b128 %s, v8 offset:%d" % (vr(buf, 4), (c + 4) * 1024))
    a.nop(8)
    a("v_cvt_pk_bf16_f32 v40, v32, v33")
    a("v_cvt_pk_bf16_f32 v41, v34, v35")
    a("v_mov_b32 v42, 0")
    a("v_mov_b32 v43, 0")
    a("v_cvt_pk_bf16_f32 v44, v36, v37")
    a("v_cvt_pk_bf16_f32 v45, v38, v39")
    a("v_mov_b32 v46, 0")
    a("v_mov_b32 v47, 0")
    a("s_add_u32 s9, s8, %d" % VM_F)
    a("buffer_store_dwordx4 v[40:43], v4, s[40:43], s9 offen")
    a("buffer_store_dwordx4 v[44:47], v4, s[40:43], s9 offen offset:1024")
    a("s_waitcnt lgkmcnt(0)")
    a("s_barrier")
    for w in range(4):
        for q in range(3):
            a("ds_read_b128 %s, v9 offset:%d" % (vr(64 + w * 12 + q * 4, 4), LDS_SC + w * 3072 + q * 16))
    a("s_waitcnt lgkmcnt(0)")
    for i in range(12):
        a("v_add_f32 v%d, v%d, v%d" % (64 + i, 64 + i, 76 + i))
        a("v_add_f32 v%d, v%d, v%d" % (88 + i, 88 + i, 100 + i))
        a("v_add_f32 v%d, v%d, v%d" % (64 + i, 64 + i, 88 + i))
    for i in range(12):
        scale_round(a, 64 + i, 0)
    a("v_mov_b32 v80, 0xce6e6b28")
    a("v_cmp_gt_u32 vcc, 2, v2")
    a("s_nop 1")
    for i in range(8, 12):
        a("v_cndmask_b32 v%d, v80, v%d, vcc" % (64 + i, 64 + i))
    softmax12(a, 64, 80, 5, 6, 84)
    a("v_mov_b32 v90, 0")
    a("v_mov_b32 v91, 0")
    a.nop(2)
    for et in range(2):
        mfma(a, vr(32 + 4 * et, 4), vr(24 + 4 * et, 4), vr(84, 4), "0")
        mfma(a, vr(32 + 4 * et, 4), vr(40 + 4 * et, 4), vr(88, 4), vr(32 + 4 * et, 4))
    a("s_cmp_eq_u32 s20, 63")
    a("s_cbranch_scc1 rec_end")
    a.nop(8)
    a("v_cvt_pk_bf16_f32 v32, v32, v33")
    a("v_cvt_pk_bf16_f32 v33, v34, v35")
    a("v_cvt_pk_bf16_f32 v34, v36, v37")
    a("v_cvt_pk_bf16_f32 v35, v38, v39")
    a("ds_write_b128 v11, v[32:35] offset:%d" % LDS_OB)
    a("s_waitcnt lgkmcnt(0)")
    a("s_barrier")
    for sl in range(4):
        a("ds_read_b128 %s, v4 offset:%d" % (vr(48 + 4 * sl, 4), LDS_OB + sl * 1024))
    a("s_waitcnt lgkmcnt(0)")
    for i in range(8):
        for sl in range(4):
            d = vr(64 + 4 * i, 4)
            mfma(a, d, vr(128 + (i * 4 + sl) * 4, 4), vr(48 + 4 * sl, 4), "0" if sl == 0 else d)
    a("s_lshl_b32 s9, s3, 17")
    a("s_lshl_b32 s11, s2, 9")
    a("s_add_u32 s9, s9, s11")
    a("s_add_u32 s9, s9, %d" % RS_B)
    a("v_cmp_gt_u32 vcc, 8, v3")
    a("s_and_saveexec_b64 s[12:13], vcc")
    a.nop(6)
    for i in range(8):
        a("buffer_store_dwordx4 %s, v12, s[40:43], s9 offen %s" % (vr(64 + 4 * i, 4), SCO))
        if i < 7:
            a("s_add_u32 s9, s9, 16384")
    a("s_mov_b64 exec, s[12:13]")
    a("s_waitcnt vmcnt(0)")
    a("s_barrier")
    a("s_add_u32 s20, s20, 1")
    a("s_cmp_eq_u32 s3, 0")
    a("s_cbranch_scc0 rec_loop")
    a("v_mov_b32 v14, s20")
    a("s_lshl_b32 s9, s2, 2")
    a("v_mov_b32 v15, 0")
    a("s_mov_b64 s[12:13], exec")
    a("s_mov_b64 exec, 1")
    a("buffer_store_dword v14, v15, s[48:51], s9 offen %s" % SCO)
    a("s_mov_b64 exec, s[12:13]")
    a("s_mov_b32 s10, 0")
    a.label("rec_poll_rs")
    a("buffer_load_dword v14, v13, s[48:51], 0 offen %s" % SCO)
    a("s_add_u32 s10, s10, 1")
    a("s_waitcnt vmcnt(0)")
    a("v_cmp_le_u32 vcc, s20, v14")
    a("s_cmp_gt_u32 s10, 0x200000")
    a("s_cbranch_scc1 rec_end")
    a("s_cmp_eq_u64 vcc, exec")
    a("s_cbranch_scc0 rec_poll_rs")
    a("s_lshl_b32 s9, s2, 14")
    a("s_add_u32 s9, s9, %d" % RS_B)
    for k in range(16):
        if k % 4 == 0 and k:
            a("s_add_u32 s9, s9, 4096")
        a("buffer_load_dwordx4 %s, v4, s[40:43], s9 offen offset:%d %s" % (vr(64 + 4 * k, 4), (k % 4) * 1024, SCO))
    for k in range(1, 16):
        a("s_waitcnt vmcnt(%d)" % (15 - k))
        for i in range(4):
            a("v_add_f32 v%d, v%d, v%d" % (64 + i, 64 + i, 64 + 4 * k + i))
    for i in range(4):
        a("ds_bpermute_b32 v%d, v6, v%d" % (68 + i, 64 + i))
    a("s_waitcnt lgkmcnt(0)")
    for i in range(4):
        a("v_add_f32 v%d, v%d, v%d" % (64 + i, 64 + i, 68 + i))
    a("v_cvt_pk_bf16_f32 v64, v64, v65")
    a("v_cvt_pk_bf16_f32 v65, v66, v67")
    a("v_lshrrev_b32 v66, 2, v1")
    a("v_lshlrev_b32 v66, 10, v66")
    a("v_and_b32 v67, 3, v1")
    a("v_lshl_add_u32 v66, v67, 3, v66")
    a("s_lshl_b32 s9, s2, 5")
    a("s_mov_b32 exec_lo, -1")
    a("s_mov_b32 exec_hi, 0")
    a("buffer_store_dwordx2 v[64:65], v66, s[52:55], s9 offen %s" % SCO)
    a("s_waitcnt vmcnt(0)")
    a("s_mov_b64 exec, 1")
    a("v_mov_b32 v14, s20")
    a("s_lshl_b32 s9, s2, 2")
    a("buffer_store_dword v14, v15, s[48:51], s9 offen offset:128 %s" % SCO)
    a("s_mov_b64 exec, -1")
    a("s_branch rec_loop")
    a.label("rec_end")
    a("s_endpgm")
    return kd("rec_kernel", 512, 256)


def gen_attn(a):
    kernel_begin(a, "attn_kernel")
    a("s_cmp_ge_u32 s2, 512")
    a("s_cbranch_scc1 attn_end")
    a("s_load_dwordx2 s[22:23], s[0:1], %d" % KA_WS)
    lane_setup(a)
    a("s_lshl_b32 s4, s2, 2")
    a("s_add_u32 s4, s4, s3")
    a("v_lshlrev_b32 v4, 4, v1")
    a("v_xor_b32 v5, 16, v1")
    a("v_lshlrev_b32 v5, 2, v5")
    a("v_xor_b32 v6, 32, v1")
    a("v_lshlrev_b32 v6, 2, v6")
    a("s_waitcnt lgkmcnt(0)")
    srd(a, 40, 22, WS_BYTES)
    a("s_lshl_b32 s5, s4, 13")
    a("s_lshl_b32 s6, s4, 12")
    def ld(dst, base, n):
        for c in range(n):
            if c % 4 == 0:
                a("s_add_u32 s7, s%d, %d" % (base[0], base[1] + c * 1024))
            a("buffer_load_dwordx4 %s, v4, s[40:43], s7 offen offset:%d" % (vr(dst + 4 * c, 4), (c % 4) * 1024))
    ld(32, (5, Q_F), 8)
    ld(64, (5, K_F), 8)
    ld(96, (6, KM_F), 4)
    ld(112, (5, V_F), 8)
    ld(144, (5, VM_F), 8)
    a("s_waitcnt vmcnt(16)")
    for tq in range(2):
        for sl in range(4):
            q = vr(32 + (sl * 2 + tq) * 4, 4)
            for jt in range(2):
                d = vr(176 + tq * 12 + jt * 4, 4)
                mfma(a, d, vr(64 + (sl * 2 + jt) * 4, 4), q, "0" if sl == 0 else d)
            d = vr(176 + tq * 12 + 8, 4)
            mfma(a, d, vr(96 + sl * 4, 4), q, "0" if sl == 0 else d)
    a.nop(8)
    a("v_mov_b32 v8, 0xce6e6b28")
    a("v_lshlrev_b32 v9, 2, v2")
    for tq in range(2):
        S = 176 + tq * 12
        for i in range(12):
            scale_round(a, S + i, 0)
        for idx in range(8):
            koff = 16 * (idx // 4) + idx % 4 - 16 * tq
            if koff <= -16:
                continue
            a("v_add_u32 v10, %d, v9" % (koff + 64))
            a("v_add_u32 v11, 64, v3")
            a("v_cmp_le_u32 vcc, v10, v11")
            a("s_nop 1")
            a("v_cndmask_b32 v%d, v8, v%d, vcc" % (S + idx, S + idx))
        a("v_cmp_gt_u32 vcc, 2, v2")
        a("s_nop 1")
        for i in range(8, 12):
            a("v_cndmask_b32 v%d, v8, v%d, vcc" % (S + i, S + i))
        softmax12(a, S, 12, 5, 6, 200 + tq * 8)
        a("v_mov_b32 v%d, 0" % (206 + tq * 8))
        a("v_mov_b32 v%d, 0" % (207 + tq * 8))
    a("s_waitcnt vmcnt(0)")
    a.nop(2)
    for et in range(8):
        for tq in range(2):
            d = vr(32 + (et * 2 + tq) * 4, 4)
            mfma(a, d, vr(112 + et * 4, 4), vr(200 + tq * 8, 4), "0")
            mfma(a, d, vr(144 + et * 4, 4), vr(204 + tq * 8, 4), d)
    a.nop(8)
    a("s_lshr_b32 s7, s4, 5")
    a("s_and_b32 s8, s4, 31")
    a("s_lshl_b32 s7, s7, 18")
    a("s_lshl_b32 s8, s8, 12")
    a("s_add_u32 s7, s7, s8")
    a("s_add_u32 s7, s7, %d" % O_F)
    a("s_add_u32 s8, s7, 131072")
    for p in range(4):
        for tq in range(2):
            b0 = 32 + ((2 * p) * 2 + tq) * 4
            b1 = 32 + ((2 * p + 1) * 2 + tq) * 4
            d = 216 + ((p * 2 + tq) % 2) * 4
            a("v_cvt_pk_bf16_f32 v%d, v%d, v%d" % (d, b0, b0 + 1))
            a("v_cvt_pk_bf16_f32 v%d, v%d, v%d" % (d + 1, b0 + 2, b0 + 3))
            a("v_cvt_pk_bf16_f32 v%d, v%d, v%d" % (d + 2, b1, b1 + 1))
            a("v_cvt_pk_bf16_f32 v%d, v%d, v%d" % (d + 3, b1 + 2, b1 + 3))
            a("buffer_store_dwordx4 %s, v4, s[40:43], s%d offen offset:%d" % (vr(d, 4), 7 + tq, p * 1024))
            a("s_nop 1")
    a.label("attn_end")
    a("s_endpgm")
    return kd("attn_kernel", 224, 224)


def gen_splitk(a, name, nks, A_F, B_F, res_is_x):
    per = nks // 4
    kernel_begin(a, name)
    a("s_cmp_ge_u32 s2, 256")
    a("s_cbranch_scc1 %s_end" % name)
    a("s_load_dwordx2 s[22:23], s[0:1], %d" % KA_WS)
    a("s_load_dwordx2 s[24:25], s[0:1], %d" % (KA_X if res_is_x else KA_OUT))
    lane_setup(a)
    a("s_and_b32 s4, s2, 7")
    a("s_lshr_b32 s5, s2, 3")
    a("v_lshlrev_b32 v4, 4, v1")
    a("s_waitcnt lgkmcnt(0)")
    srd(a, 40, 22, WS_BYTES)
    srd(a, 44, 24, 2048 * 512 * 2)
    a("s_mul_i32 s6, s5, %d" % (4 * nks * 1024))
    a("s_mul_i32 s7, s3, %d" % (per * 1024))
    a("s_add_u32 s6, s6, s7")
    a("s_add_u32 s6, s6, %d" % A_F)
    a("s_mul_i32 s8, s4, %d" % (4 * nks * 1024))
    a("s_add_u32 s8, s8, s7")
    a("s_add_u32 s8, s8, %d" % B_F)
    for i in range(4):
        a("v_add_u32 v%d, %d, v4" % (8 + i, i * nks * 1024))
    def ld(ks):
        buf = 32 + (ks % 3) * 32
        for i in range(4):
            a("buffer_load_dwordx4 %s, v%d, s[40:43], s6 offen offset:%d" % (vr(buf + 4 * i, 4), 8 + i, (ks % 4) * 1024))
        for i in range(4):
            a("buffer_load_dwordx4 %s, v%d, s[40:43], s8 offen offset:%d" % (vr(buf + 16 + 4 * i, 4), 8 + i, (ks % 4) * 1024))
        if ks % 4 == 3:
            a("s_add_u32 s6, s6, 4096")
            a("s_add_u32 s8, s8, 4096")
    ld(0)
    ld(1)
    for ks in range(per):
        if ks + 2 < per:
            ld(ks + 2)
        a("s_waitcnt vmcnt(%d)" % (8 * min(2, per - 1 - ks)))
        buf = 32 + (ks % 3) * 32
        for i in range(4):
            for j in range(4):
                d = vr(128 + (i * 4 + j) * 4, 4)
                mfma(a, d, vr(buf + 16 + 4 * j, 4), vr(buf + 4 * i, 4), "0" if ks == 0 else d)
    a.nop(8)
    a("s_cmp_eq_u32 s3, 0")
    a("s_cbranch_scc1 %s_w0" % name)
    a("s_sub_u32 s9, s3, 1")
    a("s_lshl_b32 s9, s9, 14")
    a("v_add_u32 v5, s9, v4")
    for t in range(16):
        a("ds_write_b128 v5, %s offset:%d" % (vr(128 + 4 * t, 4), t * 1024))
    a("s_waitcnt lgkmcnt(0)")
    a("s_barrier")
    a("s_branch %s_end" % name)
    a.label("%s_w0" % name)
    a("v_lshlrev_b32 v6, 10, v3")
    a("v_lshl_add_u32 v6, v2, 3, v6")
    a("s_lshl_b32 s9, s5, 16")
    a("s_lshl_b32 s10, s4, 7")
    a("s_add_u32 s9, s9, s10")
    rsrd = 44 if res_is_x else 40
    if not res_is_x:
        a("s_add_u32 s11, s9, %d" % H_B)
    else:
        a("s_mov_b32 s11, s9")
    for i in range(4):
        for j in range(4):
            if j == 0:
                a("s_add_u32 s12, s11, %d" % (i * 16384))
            a("buffer_load_dwordx2 %s, v6, s[%d:%d], s12 offen offset:%d" % (vr(192 + (i * 4 + j) * 2, 2), rsrd, rsrd + 3, j * 32))
    a("s_barrier")
    for t in range(16):
        for w in range(3):
            a("ds_read_b128 %s, v4 offset:%d" % (vr(32 + w * 4, 4), w * 16384 + t * 1024))
        a("s_waitcnt lgkmcnt(0)")
        for i in range(4):
            a("v_add_f32 v%d, v%d, v%d" % (32 + i, 32 + i, 36 + i))
            a("v_add_f32 v%d, v%d, v%d" % (128 + 4 * t + i, 128 + 4 * t + i, 40 + i))
            a("v_add_f32 v%d, v%d, v%d" % (128 + 4 * t + i, 128 + 4 * t + i, 32 + i))
    a("s_waitcnt vmcnt(0)")
    if res_is_x:
        a("s_add_u32 s11, s9, %d" % H_B)
        osrd = 40
    else:
        a("s_mov_b32 s11, s9")
        osrd = 44
    for i in range(4):
        for j in range(4):
            t = i * 4 + j
            acc = 128 + 4 * t
            rr = 192 + 2 * t
            for q in range(4):
                round_bf16(a, acc + q, acc + q)
            a("v_lshlrev_b32 v32, 16, v%d" % rr)
            a("v_and_b32 v33, 0xffff0000, v%d" % rr)
            a("v_lshlrev_b32 v34, 16, v%d" % (rr + 1))
            a("v_and_b32 v35, 0xffff0000, v%d" % (rr + 1))
            for q in range(4):
                a("v_add_f32 v%d, v%d, v%d" % (acc + q, acc + q, 32 + q))
            a("v_cvt_pk_bf16_f32 v%d, v%d, v%d" % (rr, acc, acc + 1))
            a("v_cvt_pk_bf16_f32 v%d, v%d, v%d" % (rr + 1, acc + 2, acc + 3))
            if j == 0:
                a("s_add_u32 s12, s11, %d" % (i * 16384))
            a("buffer_store_dwordx2 %s, v6, s[%d:%d], s12 offen offset:%d" % (vr(rr, 2), osrd, osrd + 3, j * 32))
    a.label("%s_end" % name)
    a("s_endpgm")
    return kd(name, 224, 224)


def gen_ffn1(a):
    kernel_begin(a, "ffn1_kernel")
    a("s_cmp_ge_u32 s2, 224")
    a("s_cbranch_scc1 ffn1_end")
    a("s_load_dwordx2 s[22:23], s[0:1], %d" % KA_WS)
    lane_setup(a)
    a("s_and_b32 s4, s2, 15")
    a("s_lshr_b32 s5, s2, 4")
    a("v_lshlrev_b32 v4, 4, v1")
    a("v_add_u32 v5, 0x10000, v4")
    a("v_xor_b32 v6, 16, v1")
    a("v_lshlrev_b32 v6, 2, v6")
    a("v_xor_b32 v7, 32, v1")
    a("v_lshlrev_b32 v7, 2, v7")
    a("s_waitcnt lgkmcnt(0)")
    srd(a, 40, 22, WS_BYTES)
    a("v_lshlrev_b32 v8, 10, v3")
    a("v_lshl_add_u32 v8, v2, 4, v8")
    for half in range(2):
        a("s_lshl_b32 s6, s4, 17")
        a("s_lshl_b32 s7, s3, 15")
        a("s_add_u32 s7, s7, %d" % (half * 16384))
        a("s_add_u32 s6, s6, s7")
        a("s_add_u32 s6, s6, %d" % H_B)
        for kk in range(16):
            a("buffer_load_dwordx4 %s, v8, s[40:43], s6 offen offset:%d" % (vr(32 + 4 * kk, 4), kk * 64))
        a("s_waitcnt vmcnt(0)")
        layernorm_rows(a, 32, 16, 96, 16, 6, 7)
        a("v_add_u32 v9, s7, v4")
        for kk in range(16):
            a("ds_write_b128 v9, %s offset:%d" % (vr(32 + 4 * kk, 4), kk * 1024))
    a("s_waitcnt lgkmcnt(0)")
    a("s_barrier")
    a("s_lshl_b32 s12, s5, 3")
    a("s_lshl_b32 s13, s3, 1")
    a("s_add_u32 s12, s12, s13")
    a("s_lshl_b32 s14, s12, 14")
    a("s_add_u32 s14, s14, %d" % WGU_F)
    a("v_mov_b32 v8, v4")
    a("v_add_u32 v9, 16384, v4")
    a("v_add_u32 v10, %d, v4" % (112 * 16384))
    a("v_add_u32 v11, %d, v4" % (113 * 16384))
    gemm_panel_core(a, False, 4, 5, 8, 14, 40)
    a("s_lshl_b32 s17, s4, 3")
    a("s_mul_i32 s17, s17, %d" % (56 * 1024))
    a("s_lshl_b32 s18, s12, 9")
    a("s_add_u32 s17, s17, s18")
    a("s_add_u32 s17, s17, %d" % ACT_F)
    for tt in range(8):
        for i in range(4):
            a("v_accvgpr_read_b32 v%d, a%d" % (16 + i, (tt * 4 + 0) * 4 + i))
            a("v_accvgpr_read_b32 v%d, a%d" % (20 + i, (tt * 4 + 1) * 4 + i))
            a("v_accvgpr_read_b32 v%d, a%d" % (24 + i, (tt * 4 + 2) * 4 + i))
            a("v_accvgpr_read_b32 v%d, a%d" % (28 + i, (tt * 4 + 3) * 4 + i))
        for i in range(16):
            round_bf16(a, 16 + i, 16 + i)
        for i in range(8):
            a("v_mul_f32 v%d, v%d, v%d" % (16 + i, 16 + i, 24 + i))
        d = 32 + (tt % 2) * 4
        for i in range(4):
            a("v_cvt_pk_bf16_f32 v%d, v%d, v%d" % (d + i, 16 + 2 * i, 17 + 2 * i))
        a("buffer_store_dwordx4 %s, v4, s[40:43], s17 offen" % vr(d, 4))
        a("s_add_u32 s17, s17, %d" % (56 * 1024))
    a.label("ffn1_end")
    a("s_endpgm")
    return kd("ffn1_kernel", 224 + 128, 224)


def main():
    a = A()
    hdr = []
    ref = open("cdna_kernels/%s.s.ref" % NAME).read().split("\n")
    for l in ref:
        if l.startswith("; @launch") or l.startswith("; Override") or l.startswith("; grid="):
            continue
        if l.startswith(";"):
            hdr.append(l)
        else:
            break
    launches = [
        ("prep_kernel", (N_PREP + 3) // 4, 0),
        ("qkv_kernel", 256, 131072),
        ("rec_kernel", 32, REC_LDS),
        ("attn_kernel", 512, 0),
        ("wo_kernel", 256, 49152),
        ("ffn1_kernel", 224, 131072),
        ("ffn2_kernel", 256, 49152),
    ]
    for n, g, lds in launches:
        hdr.append("; @launch kernel=%s grid=(%d,1,1) block=(256,1,1) lds=%d" % (n, g, lds))
    kds = []
    kds.append(gen_prep(a))
    kds.append(gen_qkv(a))
    kds.append(gen_rec(a))
    kds.append(gen_attn(a))
    kds.append(gen_splitk(a, "wo_kernel", 128, O_F, WO_F, True))
    kds.append(gen_ffn1(a))
    kds.append(gen_splitk(a, "ffn2_kernel", 56, ACT_F, WD_F, False))
    out = "\n".join(hdr) + "\n"
    out += '.amdgcn_target "amdgcn-amd-amdhsa--gfx950"\n.text\n'
    out += a.text()
    out += '.section .rodata,"a"\n'
    for k in kds:
        out += ".p2align 6\n" + k
    path = sys.argv[1] if len(sys.argv) > 1 else "cdna_kernels/%s.s" % NAME
    open(path, "w").write(out)
    print("wrote", path, len(out), "bytes")


main()
```

```python
import sys
import os

NAME = "sequential_preLN__memory_aug_recurrent_mem_tr__glu_gated_bilinear__prompt"
MB = 1 << 20
XN_F = 0
WQKV_F = 2 * MB
WO_F = 14 * MB
WGU_F = 18 * MB
WD_F = 22 * MB
Q_F = 24 * MB
K_F = 40 * MB
V_F = 56 * MB
KM_F = 72 * MB
VM_F = 80 * MB
O_F = 96 * MB
H_B = 112 * MB
ACT_F = 114 * MB
RS_B = 124 * MB
MEMN = 125 * MB
CNT = 126 * MB
C_QUEUE, C_KV, C_QD, C_REC, C_AT, C_WO, C_F1 = 0, 1, 17, 33, 49, 65, 81
WS_BYTES = 256 * MB
WT = "sc0 sc1"
RD = "sc1"

KA_X, KA_MEM0, KA_WQ, KA_WK, KA_WV, KA_WO, KA_SEG, KA_BX, KA_WG, KA_WU, KA_WD, KA_OUT, KA_DBG, KA_WS = [8 * i for i in range(14)]


class A:
    def __init__(self):
        self.lines = []
        self.uid = 0

    def __call__(self, s):
        for l in s.strip("\n").split("\n"):
            self.lines.append("    " + l.strip())

    def label(self, name):
        self.lines.append(name + ":")

    def newlabel(self, p="L"):
        self.uid += 1
        return "%s_%d" % (p, self.uid)

    def nop(self, n):
        while n > 0:
            k = min(n, 16)
            self("s_nop %d" % (k - 1))
            n -= k

    def text(self):
        return "\n".join(self.lines) + "\n"


def srd(a, s, ptr_lo, nbytes):
    a("s_mov_b32 s%d, s%d" % (s, ptr_lo))
    a("s_and_b32 s%d, s%d, 0xffff" % (s + 1, ptr_lo + 1))
    a("s_mov_b32 s%d, %d" % (s + 2, nbytes))
    a("s_mov_b32 s%d, 0x00020000" % (s + 3))


def vr(b, n=1):
    return "v%d" % b if n == 1 else "v[%d:%d]" % (b, b + n - 1)


def ar(b, n=1):
    return "a%d" % b if n == 1 else "a[%d:%d]" % (b, b + n - 1)


def mfma(a, d, x, y, c):
    a("v_mfma_f32_16x16x32_bf16 %s, %s, %s, %s" % (d, x, y, c))


def kernel_begin(a, name):
    a.lines.append(".globl %s" % name)
    a.lines.append(".p2align 8")
    a.lines.append(".type %s,@function" % name)
    a.label(name)


def kd(name, vgpr, accum, sgpr=102):
    return """.amdhsa_kernel %s
  .amdhsa_next_free_vgpr %d
  .amdhsa_next_free_sgpr %d
  .amdhsa_accum_offset %d
  .amdhsa_group_segment_fixed_size 0
  .amdhsa_kernarg_size 112
  .amdhsa_user_sgpr_count 2
  .amdhsa_user_sgpr_kernarg_segment_ptr 1
  .amdhsa_system_sgpr_workgroup_id_x 1
.end_amdhsa_kernel
""" % (name, vgpr, sgpr, accum)


def lane_setup(a, vlane=1, vg=2, vr_=3, swave=3):
    a("v_lshrrev_b32 v%d, 6, v0" % vlane)
    a("s_nop 0")
    a("v_readfirstlane_b32 s%d, v%d" % (swave, vlane))
    a("v_and_b32 v%d, 63, v0" % vlane)
    a("v_lshrrev_b32 v%d, 4, v%d" % (vg, vlane))
    a("v_and_b32 v%d, 15, v%d" % (vr_, vlane))


def round_bf16(a, dst, src):
    a("v_cvt_pk_bf16_f32 v%d, v%d, v%d" % (dst, src, src))
    a("v_lshlrev_b32 v%d, 16, v%d" % (dst, dst))


def xlane_sum4(a, v, tmp, vaddr16, vaddr32):
    a("ds_bpermute_b32 v%d, v%d, v%d" % (tmp, vaddr16, v))
    a("s_waitcnt lgkmcnt(0)")
    a("v_add_f32 v%d, v%d, v%d" % (v, v, tmp))
    a("ds_bpermute_b32 v%d, v%d, v%d" % (tmp, vaddr32, v))
    a("s_waitcnt lgkmcnt(0)")
    a("v_add_f32 v%d, v%d, v%d" % (v, v, tmp))


def xlane_max4(a, v, tmp, vaddr16, vaddr32):
    a("ds_bpermute_b32 v%d, v%d, v%d" % (tmp, vaddr16, v))
    a("s_waitcnt lgkmcnt(0)")
    a("v_max_f32 v%d, v%d, v%d" % (v, v, tmp))
    a("ds_bpermute_b32 v%d, v%d, v%d" % (tmp, vaddr32, v))
    a("s_waitcnt lgkmcnt(0)")
    a("v_max_f32 v%d, v%d, v%d" % (v, v, tmp))


def layernorm_rows(a, raw, nk, f32, tmp, vaddr16, vaddr32):
    n = nk * 8
    t0, t1, t2, t3, t4, t5 = [tmp + i for i in range(6)]
    for i in range(nk * 4):
        a("v_lshlrev_b32 v%d, 16, v%d" % (f32 + 2 * i, raw + i))
        a("v_and_b32 v%d, 0xffff0000, v%d" % (f32 + 2 * i + 1, raw + i))
    a("v_add_f32 v%d, v%d, v%d" % (t0, f32, f32 + 1))
    for i in range(2, n):
        a("v_add_f32 v%d, v%d, v%d" % (t0, t0, f32 + i))
    xlane_sum4(a, t0, t1, vaddr16, vaddr32)
    a("v_mul_f32 v%d, 0x3b000000, v%d" % (t0, t0))
    a("v_mov_b32 v%d, 0" % t2)
    for i in range(n):
        a("v_sub_f32 v%d, v%d, v%d" % (t1, f32 + i, t0))
        a("v_fmac_f32 v%d, v%d, v%d" % (t2, t1, t1))
    xlane_sum4(a, t2, t1, vaddr16, vaddr32)
    a("v_mul_f32 v%d, 0x3b000000, v%d" % (t2, t2))
    round_bf16(a, t0, t0)
    round_bf16(a, t2, t2)
    a("v_add_f32 v%d, 0x3727c5ac, v%d" % (t2, t2))
    round_bf16(a, t2, t2)
    a("v_sqrt_f32 v%d, v%d" % (t2, t2))
    a("s_nop 0")
    round_bf16(a, t2, t2)
    a("v_rcp_f32 v%d, v%d" % (t3, t2))
    a("s_nop 0")
    a("v_fma_f32 v%d, -v%d, v%d, 2.0" % (t4, t2, t3))
    a("v_mul_f32 v%d, v%d, v%d" % (t3, t3, t4))
    for i in range(nk * 4):
        lo, hi = f32 + 2 * i, f32 + 2 * i + 1
        a("v_sub_f32 v%d, v%d, v%d" % (lo, lo, t0))
        a("v_sub_f32 v%d, v%d, v%d" % (hi, hi, t0))
        a("v_cvt_pk_bf16_f32 v%d, v%d, v%d" % (t4, lo, hi))
        a("v_lshlrev_b32 v%d, 16, v%d" % (lo, t4))
        a("v_and_b32 v%d, 0xffff0000, v%d" % (hi, t4))
        a("v_mul_f32 v%d, v%d, v%d" % (lo, lo, t3))
        a("v_mul_f32 v%d, v%d, v%d" % (hi, hi, t3))
        a("v_cvt_pk_bf16_f32 v%d, v%d, v%d" % (raw + i, lo, hi))


N_QKV = 12288
N_WO = 4096
N_GU = 3584
N_WD = 1792
N_W = N_QKV + N_WO + N_GU + N_WD
N_ZERO = 512 + 16 + 8
N_PREP = N_W + 128 + N_ZERO


def gen_prep(a):
    kernel_begin(a, "prep_kernel")
    a("s_load_dwordx4 s[4:7], s[0:1], %d" % KA_WQ)
    a("s_load_dwordx4 s[12:15], s[0:1], %d" % KA_WV)
    a("s_load_dwordx4 s[16:19], s[0:1], %d" % KA_WG)
    a("s_load_dwordx2 s[20:21], s[0:1], %d" % KA_WD)
    a("s_load_dwordx2 s[22:23], s[0:1], %d" % KA_WS)
    a("s_load_dwordx2 s[32:33], s[0:1], %d" % KA_X)
    lane_setup(a)
    a("s_lshl_b32 s31, s2, 2")
    a("s_add_u32 s31, s31, s3")
    a("s_waitcnt lgkmcnt(0)")
    srd(a, 40, 22, WS_BYTES)
    a("s_cmp_ge_u32 s31, %d" % N_PREP)
    a("s_cbranch_scc1 prep_end")
    a("s_cmp_ge_u32 s31, %d" % (N_W + 128))
    a("s_cbranch_scc1 prep_zero")
    a("s_cmp_ge_u32 s31, %d" % N_W)
    a("s_cbranch_scc1 prep_ln")
    a("s_cmp_ge_u32 s31, %d" % N_QKV)
    a("s_cbranch_scc1 prep_c1")
    a("s_lshr_b32 s34, s31, 12")
    a("s_mov_b64 s[24:25], s[4:5]")
    a("s_cmp_eq_u32 s34, 1")
    a("s_cselect_b64 s[24:25], s[6:7], s[24:25]")
    a("s_cmp_eq_u32 s34, 2")
    a("s_cselect_b64 s[24:25], s[12:13], s[24:25]")
    a("s_mov_b32 s26, %d" % (512 * 4096 * 2))
    a("s_mov_b32 s27, 8192")
    a("s_lshr_b32 s35, s31, 4")
    a("s_and_b32 s35, s35, 255")
    a("s_and_b32 s36, s31, 15")
    a("s_mov_b32 s29, 0")
    a("s_lshl_b32 s30, s31, 10")
    a("s_add_u32 s30, s30, %d" % WQKV_F)
    a("s_branch prep_go")
    a.label("prep_c1")
    a("s_cmp_ge_u32 s31, %d" % (N_QKV + N_WO))
    a("s_cbranch_scc1 prep_c2")
    a("s_sub_u32 s34, s31, %d" % N_QKV)
    a("s_mov_b64 s[24:25], s[14:15]")
    a("s_mov_b32 s26, %d" % (4096 * 512 * 2))
    a("s_mov_b32 s27, 1024")
    a("s_lshr_b32 s35, s34, 7")
    a("s_and_b32 s36, s34, 127")
    a("s_mov_b32 s29, 1")
    a("s_lshl_b32 s30, s34, 10")
    a("s_add_u32 s30, s30, %d" % WO_F)
    a("s_branch prep_go")
    a.label("prep_c2")
    a("s_cmp_ge_u32 s31, %d" % (N_QKV + N_WO + N_GU))
    a("s_cbranch_scc1 prep_c3")
    a("s_sub_u32 s34, s31, %d" % (N_QKV + N_WO))
    a("s_lshl_b32 s30, s34, 10")
    a("s_add_u32 s30, s30, %d" % WGU_F)
    a("s_mov_b64 s[24:25], s[16:17]")
    a("s_cmp_ge_u32 s34, 1792")
    a("s_cselect_b64 s[24:25], s[18:19], s[24:25]")
    a("s_cselect_b32 s37, 1792, 0")
    a("s_sub_u32 s34, s34, s37")
    a("s_mov_b32 s26, %d" % (512 * 1792 * 2))
    a("s_mov_b32 s27, 3584")
    a("s_lshr_b32 s35, s34, 4")
    a("s_and_b32 s36, s34, 15")
    a("s_mov_b32 s29, 0")
    a("s_branch prep_go")
    a.label("prep_c3")
    a("s_sub_u32 s34, s31, %d" % (N_QKV + N_WO + N_GU))
    a("s_lshl_b32 s30, s34, 10")
    a("s_add_u32 s30, s30, %d" % WD_F)
    a("s_mov_b64 s[24:25], s[20:21]")
    a("s_mov_b32 s26, %d" % (1792 * 512 * 2))
    a("s_mov_b32 s27, 1024")
    a("s_mul_hi_u32 s35, s34, %d" % ((1 << 32) // 56 + 1))
    a("s_mul_i32 s37, s35, 56")
    a("s_sub_u32 s36, s34, s37")
    a("s_mov_b32 s29, 1")
    a.label("prep_go")
    a("s_mul_i32 s28, s36, s27")
    a("s_lshl_b32 s28, s28, 5")
    a("s_lshl_b32 s37, s35, 5")
    a("s_add_u32 s28, s28, s37")
    a("s_mov_b32 s8, s24")
    a("s_and_b32 s9, s25, 0xffff")
    a("s_mov_b32 s10, s26")
    a("s_mov_b32 s11, 0x00020000")
    a("s_cmp_eq_u32 s29, 1")
    a("s_cselect_b32 s37, 2, 3")
    a("s_lshl_b32 s38, s27, s37")
    a("v_mul_lo_u32 v4, v2, s38")
    a("v_lshl_add_u32 v4, v3, 1, v4")
    a("s_cmp_eq_u32 s29, 1")
    a("s_cselect_b32 s39, 16, 4")
    a("s_mul_i32 s39, s39, s27")
    for idx in range(8):
        if idx == 0:
            a("s_mov_b32 s44, s28")
        elif idx == 4:
            a("s_add_u32 s48, s28, s39")
        else:
            a("s_add_u32 s%d, s%d, s27" % (44 + idx, 43 + idx))
    for idx in range(8):
        a("buffer_load_ushort v%d, v4, s[8:11], s%d offen" % (16 + idx, 44 + idx))
    a("v_lshlrev_b32 v5, 4, v1")
    a("s_waitcnt vmcnt(0)")
    for i in range(4):
        a("v_lshl_or_b32 v%d, v%d, 16, v%d" % (8 + i, 17 + 2 * i, 16 + 2 * i))
    a("buffer_store_dwordx4 v[8:11], v5, s[40:43], s30 offen")
    a("s_branch prep_end")
    a.label("prep_ln")
    a("s_sub_u32 s34, s31, %d" % N_W)
    srd(a, 8, 32, 2048 * 512 * 2)
    a("v_lshlrev_b32 v4, 10, v3")
    a("v_lshl_add_u32 v4, v2, 4, v4")
    a("s_lshl_b32 s35, s34, 14")
    for kk in range(16):
        a("buffer_load_dwordx4 %s, v4, s[8:11], s35 offen offset:%d" % (vr(16 + 4 * kk, 4), kk * 64))
    a("v_xor_b32 v5, 16, v1")
    a("v_lshlrev_b32 v5, 2, v5")
    a("v_xor_b32 v6, 32, v1")
    a("v_lshlrev_b32 v6, 2, v6")
    a("s_waitcnt vmcnt(0)")
    layernorm_rows(a, 16, 16, 96, 8, 5, 6)
    a("v_lshlrev_b32 v5, 4, v1")
    a("s_add_u32 s35, s35, %d" % XN_F)
    for kk in range(16):
        if kk % 4 == 0 and kk:
            a("s_add_u32 s35, s35, 4096")
        a("buffer_store_dwordx4 %s, v5, s[40:43], s35 offen offset:%d" % (vr(16 + 4 * kk, 4), (kk % 4) * 1024))
    a("s_branch prep_end")
    a.label("prep_zero")
    a("s_sub_u32 s34, s31, %d" % (N_W + 128))
    a("s_lshl_b32 s35, s34, 10")
    a("s_cmp_ge_u32 s34, 512")
    a("s_cselect_b32 s36, %d, 0" % (MEMN - 512 * 1024 - RS_B))
    a("s_cmp_ge_u32 s34, 528")
    a("s_cselect_b32 s36, %d, s36" % (CNT - 528 * 1024 - RS_B))
    a("s_add_u32 s36, s36, %d" % RS_B)
    a("s_add_u32 s35, s35, s36")
    a("v_mov_b32 v8, 0")
    a("v_mov_b32 v9, 0")
    a("v_mov_b32 v10, 0")
    a("v_mov_b32 v11, 0")
    a("v_lshlrev_b32 v5, 4, v1")
    a("buffer_store_dwordx4 v[8:11], v5, s[40:43], s35 offen")
    a.label("prep_end")
    a("s_endpgm")
    return kd("prep_kernel", 224, 224)


ABUF = 32
BBUF = 96


def gemm_panel_core(a, swapped, vLds0, vLds1, vB, sB, srdB):
    def ldA(kk):
        buf = ABUF + (kk & 1) * 32
        for tt in range(8):
            off = tt * 16384 + kk * 1024
            base, o = (vLds0, off) if off < 65536 else (vLds1, off - 65536)
            a("ds_read_b128 %s, v%d offset:%d" % (vr(buf + 4 * tt, 4), base, o))

    def ldB(kk):
        buf = BBUF + (kk % 3) * 16
        if kk % 4 == 0 and kk:
            a("s_add_u32 s%d, s%d, 4096" % (sB, sB))
        for j in range(4):
            a("buffer_load_dwordx4 %s, v%d, s[%d:%d], s%d offen offset:%d" % (vr(buf + 4 * j, 4), vB + j, srdB, srdB + 3, sB, (kk % 4) * 1024))

    ldB(0)
    ldB(1)
    ldA(0)
    for kk in range(16):
        if kk + 2 < 16:
            ldB(kk + 2)
        if kk + 1 < 16:
            ldA(kk + 1)
        nv = 4 * min(2, 15 - kk)
        nl = 8 if kk + 1 < 16 else 0
        a("s_waitcnt vmcnt(%d) lgkmcnt(%d)" % (nv, nl))
        abuf = ABUF + (kk & 1) * 32
        bbuf = BBUF + (kk % 3) * 16
        for tt in range(8):
            for j in range(4):
                d = ar((tt * 4 + j) * 4, 4)
                c = "0" if kk == 0 else d
                x, y = vr(abuf + 4 * tt, 4), vr(bbuf + 4 * j, 4)
                if swapped:
                    mfma(a, d, x, y, c)
                else:
                    mfma(a, d, y, x, c)
    a.nop(10)


def read_acc_pack(a, dst, acc0, acc1):
    t = dst + 4
    for i in range(4):
        a("v_accvgpr_read_b32 v%d, a%d" % (t + i, acc0 + i))
        a("v_accvgpr_read_b32 v%d, a%d" % (t + 4 + i, acc1 + i))
    a("v_cvt_pk_bf16_f32 v%d, v%d, v%d" % (dst, t, t + 1))
    a("v_cvt_pk_bf16_f32 v%d, v%d, v%d" % (dst + 1, t + 2, t + 3))
    a("v_cvt_pk_bf16_f32 v%d, v%d, v%d" % (dst + 2, t + 4, t + 5))
    a("v_cvt_pk_bf16_f32 v%d, v%d, v%d" % (dst + 3, t + 6, t + 7))


def softmax12(a, S, tmp, vaddr16, vaddr32, P):
    m, t, s = tmp, tmp + 1, tmp + 2
    a("v_max3_f32 v%d, v%d, v%d, v%d" % (m, S, S + 1, S + 2))
    for i in range(3, 12, 2):
        if i + 1 < 12:
            a("v_max3_f32 v%d, v%d, v%d, v%d" % (m, m, S + i, S + i + 1))
        else:
            a("v_max_f32 v%d, v%d, v%d" % (m, m, S + i))
    xlane_max4(a, m, t, vaddr16, vaddr32)
    for i in range(12):
        a("v_sub_f32 v%d, v%d, v%d" % (S + i, S + i, m))
        a("v_mul_f32 v%d, 0x3fb8aa3b, v%d" % (S + i, S + i))
        a("v_exp_f32 v%d, v%d" % (S + i, S + i))
    a("s_nop 0")
    a("v_add_f32 v%d, v%d, v%d" % (s, S, S + 1))
    for i in range(2, 12):
        a("v_add_f32 v%d, v%d, v%d" % (s, s, S + i))
    xlane_sum4(a, s, t, vaddr16, vaddr32)
    a("v_rcp_f32 v%d, v%d" % (t, s))
    a("s_nop 0")
    a("v_fma_f32 v%d, -v%d, v%d, 2.0" % (m, s, t))
    a("v_mul_f32 v%d, v%d, v%d" % (t, t, m))
    for i in range(12):
        a("v_mul_f32 v%d, v%d, v%d" % (S + i, S + i, t))
    for i in range(6):
        a("v_cvt_pk_bf16_f32 v%d, v%d, v%d" % (P + i, S + 2 * i, S + 2 * i + 1))


def scale_round(a, v, tmp):
    round_bf16(a, v, v)
    a("v_mul_f32 v%d, 0x3db504f3, v%d" % (v, v))
    round_bf16(a, v, v)


LDS_SC = 0
LDS_OB = 12288
LDS_MF = 16384
LDS_WV = 32768
REC_LDS = 163840
SCO = os.environ.get("SCO", "")
LDO = os.environ.get("LDO", "sc1")


def xl_reduce(a, op, v, t0, t1):
    out = []
    out.append("v_mov_b32 v%d, v%d" % (t0, v))
    out.append("v_mov_b32 v%d, v%d" % (t1, v))
    out.append("s_nop 1")
    out.append("v_permlane32_swap_b32 v%d, v%d" % (t0, t1))
    out.append("s_nop 1")
    out.append("%s v%d, v%d, v%d" % (op, v, t0, t1))
    out.append("v_mov_b32 v%d, v%d" % (t0, v))
    out.append("v_mov_b32 v%d, v%d" % (t1, v))
    out.append("s_nop 1")
    out.append("v_permlane16_swap_b32 v%d, v%d" % (t0, t1))
    out.append("s_nop 1")
    out.append("%s v%d, v%d, v%d" % (op, v, t0, t1))
    return out


def softmax12_list(S, m, t, s, t0, t1, Px, Pm):
    o = []
    o.append("v_max3_f32 v%d, v%d, v%d, v%d" % (m, S, S + 1, S + 2))
    for i in range(3, 12, 2):
        if i + 1 < 12:
            o.append("v_max3_f32 v%d, v%d, v%d, v%d" % (m, m, S + i, S + i + 1))
        else:
            o.append("v_max_f32 v%d, v%d, v%d" % (m, m, S + i))
    o += xl_reduce(None, "v_max_f32", m, t0, t1)
    for i in range(12):
        o.append("v_sub_f32 v%d, v%d, v%d" % (S + i, S + i, m))
        o.append("v_mul_f32 v%d, 0x3fb8aa3b, v%d" % (S + i, S + i))
        o.append("v_exp_f32 v%d, v%d" % (S + i, S + i))
    o.append("s_nop 0")
    o.append("v_add_f32 v%d, v%d, v%d" % (s, S, S + 1))
    for i in range(2, 12):
        o.append("v_add_f32 v%d, v%d, v%d" % (s, s, S + i))
    o += xl_reduce(None, "v_add_f32", s, t0, t1)
    o.append("v_rcp_f32 v%d, v%d" % (t, s))
    o.append("s_nop 0")
    o.append("v_fma_f32 v%d, -v%d, v%d, 2.0" % (m, s, t))
    o.append("v_mul_f32 v%d, v%d, v%d" % (t, t, m))
    for i in range(12):
        o.append("v_mul_f32 v%d, v%d, v%d" % (S + i, S + i, t))
    for i in range(4):
        o.append("v_cvt_pk_bf16_f32 v%d, v%d, v%d" % (Px + i, S + 2 * i, S + 2 * i + 1))
    for i in range(2):
        o.append("v_cvt_pk_bf16_f32 v%d, v%d, v%d" % (Pm + i, S + 8 + 2 * i, S + 9 + 2 * i))
    return o


import os
STAMP = bool(os.environ.get("STAMP"))


def stamp(a, i):
    if not STAMP:
        return
    a("s_memtime s[60:61]")
    a("s_waitcnt lgkmcnt(0)")
    a("s_sub_u32 s62, s60, s63")
    a("s_add_u32 s%d, s%d, s62" % (64 + i, 64 + i))
    a("s_mov_b32 s63, s60")


def gen_rec(a):
    kernel_begin(a, "rec_kernel")
    a("s_cmp_ge_u32 s2, 256")
    a("s_cbranch_scc1 rec_end2")
    a("s_load_dwordx2 s[22:23], s[0:1], %d" % KA_WS)
    a("s_load_dwordx2 s[24:25], s[0:1], %d" % KA_MEM0)
    a("s_load_dwordx2 s[26:27], s[0:1], %d" % KA_DBG)
    lane_setup(a)
    a("v_lshlrev_b32 v4, 4, v1")
    a("s_waitcnt lgkmcnt(0)")
    srd(a, 40, 22, WS_BYTES)
    srd(a, 44, 24, 8192)
    srd(a, 48, 26, 256)
    a("v_mov_b32 v18, 0")
    a("s_cmp_eq_u32 s3, 0")
    a("s_cbranch_scc0 rec_elect_done")
    a("s_getreg_b32 s5, hwreg(HW_REG_XCC_ID, 0, 4)")
    a("s_and_b32 s5, s5, 7")
    a("s_lshl_b32 s6, s5, 2")
    a("v_mov_b32 v16, 1")
    a("v_mov_b32 v17, s6")
    a("s_mov_b64 exec, 1")
    a("buffer_atomic_add v16, v17, s[48:51], 0 offen sc0")
    a("s_waitcnt vmcnt(0)")
    a("v_readfirstlane_b32 s6, v16")
    a("s_mov_b32 s7, -1")
    a("s_cmp_ge_u32 s6, 32")
    a("s_cbranch_scc1 rec_elect_pub")
    a("s_add_u32 s8, s5, 1")
    a("s_cmp_eq_u32 s6, 31")
    a("s_cbranch_scc0 rec_elect_poll")
    a("v_mov_b32 v16, s8")
    a("v_mov_b32 v17, 0")
    a("buffer_atomic_cmpswap v[16:17], v18, s[48:51], 0 offen offset:64 sc0")
    a("s_waitcnt vmcnt(0)")
    a.label("rec_elect_poll")
    a("s_sleep 1")
    a("buffer_load_dword v16, v18, s[48:51], 0 offen offset:64 sc0 sc1")
    a("s_waitcnt vmcnt(0)")
    a("v_readfirstlane_b32 s9, v16")
    a("s_cmp_eq_u32 s9, 0")
    a("s_cbranch_scc1 rec_elect_poll")
    a("s_cmp_eq_u32 s9, s8")
    a("s_cselect_b32 s7, s6, -1")
    a.label("rec_elect_pub")
    a("v_mov_b32 v16, s7")
    a("ds_write_b32 v18, v16")
    a("s_waitcnt lgkmcnt(0)")
    a("s_mov_b64 exec, -1")
    a.label("rec_elect_done")
    a("s_barrier")
    a("ds_read_b32 v16, v18")
    a("s_waitcnt lgkmcnt(0)")
    a("v_readfirstlane_b32 s2, v16")
    a("s_barrier")
    a("s_cmp_ge_u32 s2, 32")
    a("s_cbranch_scc1 worker_start")
    a("s_lshl_b32 s4, s2, 3")
    a("s_lshl_b32 s5, s3, 1")
    a("s_add_u32 s4, s4, s5")
    a("s_lshl_b32 s4, s4, 14")
    a("s_add_u32 s4, s4, %d" % WQKV_F)
    for m in range(2):
        for c in range(32):
            if c % 4 == 0:
                a("s_add_u32 s6, s4, %d" % (m * 256 * 16384 + c * 1024))
            a("buffer_load_dwordx4 %s, v4, s[40:43], s6 offen offset:%d" % (ar(m * 128 + c * 4, 4), (c % 4) * 1024))
    a("s_lshl_b32 s7, s3, 15")
    for c in range(32):
        a("s_add_u32 s8, s7, %d" % (LDS_WV + c * 1024))
        a("s_mov_b32 m0, s8")
        a("s_add_u32 s9, s4, %d" % (2 * 256 * 16384 + c * 1024))
        a("buffer_load_dwordx4 v4, s[40:43], s9 offen lds")
    a("s_lshl_b32 s6, s3, 20")
    a("s_lshl_b32 s7, s2, 12")
    a("s_add_u32 s6, s6, s7")
    a("s_add_u32 s6, s6, %d" % WO_F)
    for i in range(8):
        for sl in range(4):
            a("buffer_load_dwordx4 %s, v4, s[40:43], s6 offen offset:%d" % (vr(128 + (i * 4 + sl) * 4, 4), sl * 1024))
        if i < 7:
            a("s_add_u32 s6, s6, 131072")
    a("v_mov_b32 v16, 0")
    a("v_mov_b32 v17, 0")
    a("v_mov_b32 v18, 0")
    a("v_mov_b32 v19, 0")
    a("s_lshl_b32 s8, s3, 12")
    a("v_add_u32 v5, s8, v4")
    for c in range(4):
        a("ds_write_b128 v5, v[16:19] offset:%d" % (LDS_MF + c * 1024))
    a("v_mul_u32_u24 v9, 48, v1")
    for c in range(6):
        a("ds_write_b128 v9, v[16:19] offset:%d" % (LDS_SC + (c // 3) * 3072 + (c % 3) * 16))
    a("v_lshlrev_b32 v7, 10, v3")
    a("v_lshl_add_u32 v7, v2, 4, v7")
    a("s_lshl_b32 s8, s3, 15")
    a("s_add_u32 s8, s8, %d" % LDS_WV)
    a("v_add_u32 v8, s8, v4")
    a("v_mul_u32_u24 v9, 48, v1")
    a("s_mul_i32 s8, s3, 3072")
    a("v_add_u32 v10, s8, v9")
    a("s_lshl_b32 s8, s3, 10")
    a("v_add_u32 v11, s8, v4")
    a("v_lshlrev_b32 v12, 6, v3")
    a("v_lshl_add_u32 v12, v2, 4, v12")
    a("v_and_b32 v13, 7, v3")
    a("v_lshrrev_b32 v14, 3, v3")
    a("v_lshlrev_b32 v15, 11, v13")
    a("v_lshl_add_u32 v15, v14, 7, v15")
    a("v_lshl_add_u32 v15, v2, 5, v15")
    a("s_lshl_b32 s8, s3, 9")
    a("v_add_u32 v15, s8, v15")
    a("v_lshl_add_u32 v13, v2, 4, v13")
    a("v_lshlrev_b32 v13, 4, v13")
    a("v_lshl_add_u32 v13, v14, 10, v13")
    a("s_lshl_b32 s8, s3, 12")
    a("v_add_u32 v13, s8, v13")
    a("v_lshrrev_b32 v14, 2, v1")
    a("v_lshlrev_b32 v14, 11, v14")
    a("v_and_b32 v0, 3, v1")
    a("v_lshl_add_u32 v14, v0, 4, v14")
    a("s_mov_b32 s20, 0")
    a("s_lshl_b32 s21, s2, 13")
    a("s_mov_b32 s30, 0xffffff00")
    a("s_mov_b32 s31, 0x07060302")
    a("s_waitcnt vmcnt(0) lgkmcnt(0)")
    a("s_barrier")
    if STAMP:
        for i in range(12):
            a("s_mov_b32 s%d, 0" % (64 + i))
        a("s_memtime s[60:61]")
        a("s_waitcnt lgkmcnt(0)")
        a("s_mov_b32 s63, s60")
    a.label("rec_loop")
    stamp(a, 0)
    a("s_lshl_b32 s8, s20, 18")
    a("s_add_u32 s8, s8, s21")
    a("s_lshl_b32 s9, s3, 11")
    a("s_add_u32 s8, s8, s9")
    a("s_cmp_eq_u32 s20, 0")
    a("s_cbranch_scc0 rec_poll_ag")
    wait_counter(a, 20, C_KV, 32, 96)
    a("s_add_u32 s9, s8, %d" % K_F)
    a("buffer_load_dwordx4 v[16:19], v4, s[40:43], s9 offen %s" % RD)
    a("buffer_load_dwordx4 v[20:23], v4, s[40:43], s9 offen offset:1024 %s" % RD)
    a("s_add_u32 s9, s8, %d" % V_F)
    a("buffer_load_dwordx4 v[24:27], v4, s[40:43], s9 offen %s" % RD)
    a("buffer_load_dwordx4 v[28:31], v4, s[40:43], s9 offen offset:1024 %s" % RD)
    for kk in range(16):
        a("buffer_load_dwordx4 %s, v7, s[44:47], 0 offen offset:%d" % (vr(64 + 4 * kk, 4), kk * 64))
    a("s_waitcnt vmcnt(0)")
    a("s_branch rec_mem_done")
    a.label("rec_poll_ag")
    a("s_mov_b32 s10, 0")
    a("s_mov_b32 s9, %d" % MEMN)
    a.label("rec_poll_ag_l")
    a("buffer_load_dwordx4 v[96:99], v15, s[40:43], s9 offen %s" % LDO)
    a("buffer_load_dwordx4 v[100:103], v15, s[40:43], s9 offen offset:16 %s" % LDO)
    a("buffer_load_dwordx4 v[104:107], v15, s[40:43], s9 offen offset:256 %s" % LDO)
    a("buffer_load_dwordx4 v[108:111], v15, s[40:43], s9 offen offset:272 %s" % LDO)
    a("s_add_u32 s10, s10, 1")
    a("s_waitcnt vmcnt(0)")
    for i in range(16):
        a("v_xor_b32 v%d, s20, v%d" % (112 + i, 96 + i))
    for i in range(0, 15, 3):
        pass
    a("v_or3_b32 v112, v112, v113, v114")
    a("v_or3_b32 v115, v115, v116, v117")
    a("v_or3_b32 v118, v118, v119, v120")
    a("v_or3_b32 v121, v121, v122, v123")
    a("v_or3_b32 v124, v124, v125, v126")
    a("v_or3_b32 v112, v112, v115, v118")
    a("v_or3_b32 v121, v121, v124, v127")
    a("v_or_b32 v112, v112, v121")
    a("v_and_b32 v112, 0xffff, v112")
    a("v_cmp_eq_u32 vcc, 0, v112")
    a("s_cmp_gt_u32 s10, 0x200000")
    a("s_cbranch_scc1 rec_end2")
    a("s_cmp_eq_u64 vcc, exec")
    a("s_cbranch_scc0 rec_poll_ag_l")
    stamp(a, 1)
    if STAMP:
        a("s_add_u32 s74, s74, s10")
    for j in range(2):
        for i in range(4):
            a("v_perm_b32 v%d, v%d, v%d, s31" % (112 + j * 4 + i, 96 + j * 8 + 2 * i + 1, 96 + j * 8 + 2 * i))
    a("ds_write_b128 v13, v[112:115] offset:%d" % LDS_MF)
    a("ds_write_b128 v13, v[116:119] offset:%d" % (LDS_MF + 2048))
    a("s_waitcnt lgkmcnt(0)")
    a("s_barrier")
    for kk in range(16):
        a("ds_read_b128 %s, v4 offset:%d" % (vr(64 + 4 * kk, 4), LDS_MF + kk * 1024))
    a.label("rec_mem_done")
    stamp(a, 2)
    for i in range(4):
        a("ds_read_b128 %s, v8 offset:%d" % (vr(48 + 4 * i, 4), i * 1024))
    a("s_waitcnt lgkmcnt(4)")
    for c in range(32):
        et, kk = c // 16, c % 16
        buf = 48 + 4 * (c % 4)
        a("s_waitcnt lgkmcnt(%d)" % min(3, 31 - c))
        d = vr(32 + et * 4, 4)
        mfma(a, d, vr(64 + 4 * kk, 4), vr(buf, 4), "0" if kk == 0 else d)
        if c + 4 < 32:
            a("ds_read_b128 %s, v8 offset:%d" % (vr(buf, 4), (c + 4) * 1024))
    for kk in range(16):
        for m in range(2):
            for et in range(2):
                d = vr(48 + m * 8 + et * 4, 4)
                mfma(a, d, ar(m * 128 + (et * 16 + kk) * 4, 4), vr(64 + 4 * kk, 4), "0" if kk == 0 else d)
    stamp(a, 3)
    a("v_cvt_pk_bf16_f32 v40, v32, v33")
    a("v_cvt_pk_bf16_f32 v41, v34, v35")
    a("v_mov_b32 v42, 0")
    a("v_mov_b32 v43, 0")
    a("v_cvt_pk_bf16_f32 v44, v36, v37")
    a("v_cvt_pk_bf16_f32 v45, v38, v39")
    a("v_mov_b32 v46, 0")
    a("v_mov_b32 v47, 0")
    a("s_add_u32 s9, s8, %d" % VM_F)
    a("buffer_store_dwordx4 v[40:43], v4, s[40:43], s9 offen %s" % WT)
    a("buffer_store_dwordx4 v[44:47], v4, s[40:43], s9 offen offset:1024 %s" % WT)
    a("v_cvt_pk_bf16_f32 v32, v48, v49")
    a("v_cvt_pk_bf16_f32 v33, v50, v51")
    a("v_cvt_pk_bf16_f32 v34, v52, v53")
    a("v_cvt_pk_bf16_f32 v35, v54, v55")
    a("v_cvt_pk_bf16_f32 v36, v56, v57")
    a("v_cvt_pk_bf16_f32 v37, v58, v59")
    a("v_cvt_pk_bf16_f32 v38, v60, v61")
    a("v_cvt_pk_bf16_f32 v39, v62, v63")
    a("s_lshl_b32 s9, s20, 17")
    a("s_lshl_b32 s11, s2, 12")
    a("s_add_u32 s9, s9, s11")
    a("s_lshl_b32 s11, s3, 10")
    a("s_add_u32 s9, s9, s11")
    a("s_add_u32 s9, s9, %d" % KM_F)
    a("s_waitcnt vmcnt(4)")
    mfma(a, vr(48, 4), vr(16, 4), vr(32, 4), "0")
    mfma(a, vr(52, 4), vr(20, 4), vr(32, 4), "0")
    mfma(a, vr(56, 4), vr(36, 4), vr(32, 4), "0")
    a("buffer_store_dwordx4 v[36:39], v4, s[40:43], s9 offen %s" % WT)
    a.nop(7)
    a("ds_write_b128 v10, v[48:51] offset:%d" % LDS_SC)
    a("ds_write_b128 v10, v[52:55] offset:%d" % (LDS_SC + 16))
    a("ds_write_b128 v10, v[56:59] offset:%d" % (LDS_SC + 32))
    a("s_waitcnt lgkmcnt(0)")
    a("s_barrier")
    stamp(a, 4)
    for w in range(4):
        for q in range(3):
            a("ds_read_b128 %s, v9 offset:%d" % (vr(64 + w * 12 + q * 4, 4), LDS_SC + w * 3072 + q * 16))
    a("s_waitcnt lgkmcnt(6)")
    for i in range(12):
        a("v_add_f32 v%d, v%d, v%d" % (64 + i, 64 + i, 76 + i))
    a("s_waitcnt lgkmcnt(0)")
    for i in range(12):
        a("v_add_f32 v%d, v%d, v%d" % (88 + i, 88 + i, 100 + i))
    for i in range(12):
        a("v_add_f32 v%d, v%d, v%d" % (64 + i, 64 + i, 88 + i))
    for i in range(12):
        a("v_cvt_pk_bf16_f32 v%d, v%d, v%d" % (64 + i, 64 + i, 64 + i))
    for i in range(12):
        a("v_lshlrev_b32 v%d, 16, v%d" % (64 + i, 64 + i))
    for i in range(12):
        a("v_mul_f32 v%d, 0x3db504f3, v%d" % (64 + i, 64 + i))
    for i in range(12):
        a("v_cvt_pk_bf16_f32 v%d, v%d, v%d" % (64 + i, 64 + i, 64 + i))
    for i in range(12):
        a("v_lshlrev_b32 v%d, 16, v%d" % (64 + i, 64 + i))
    a("v_mov_b32 v80, 0xce6e6b28")
    a("v_cmp_gt_u32 vcc, 2, v2")
    a("s_nop 1")
    for i in range(8, 12):
        a("v_cndmask_b32 v%d, v80, v%d, vcc" % (64 + i, 64 + i))
    for l in softmax12_list(64, 80, 81, 82, 83, 84, 88, 92):
        a(l)
    a("v_mov_b32 v94, 0")
    a("v_mov_b32 v95, 0")
    stamp(a, 5)
    a("s_waitcnt vmcnt(3)")
    a("s_nop 0")
    for et in range(2):
        mfma(a, vr(32 + 4 * et, 4), vr(24 + 4 * et, 4), vr(88, 4), "0")
        mfma(a, vr(32 + 4 * et, 4), vr(40 + 4 * et, 4), vr(92, 4), vr(32 + 4 * et, 4))
    a("s_cmp_eq_u32 s20, 63")
    a("s_cbranch_scc1 rec_end")
    a("s_add_u32 s14, s20, 1")
    a("s_and_b32 s15, s14, 3")
    a("s_cmp_eq_u32 s15, 0")
    a("s_cbranch_scc0 rec_kv_ready")
    a("s_lshr_b32 s14, s14, 2")
    wait_counter(a, 14, C_KV, 32, 96)
    a.label("rec_kv_ready")
    a("s_add_u32 s9, s8, %d" % (K_F + 262144))
    a("buffer_load_dwordx4 v[16:19], v4, s[40:43], s9 offen %s" % RD)
    a("buffer_load_dwordx4 v[20:23], v4, s[40:43], s9 offen offset:1024 %s" % RD)
    a("s_add_u32 s9, s8, %d" % (V_F + 262144))
    a("s_nop 3")
    a("buffer_load_dwordx4 v[24:27], v4, s[40:43], s9 offen %s" % RD)
    a("buffer_load_dwordx4 v[28:31], v4, s[40:43], s9 offen offset:1024 %s" % RD)
    a("v_cvt_pk_bf16_f32 v32, v32, v33")
    a("v_cvt_pk_bf16_f32 v33, v34, v35")
    a("v_cvt_pk_bf16_f32 v34, v36, v37")
    a("v_cvt_pk_bf16_f32 v35, v38, v39")
    a("ds_write_b128 v11, v[32:35] offset:%d" % LDS_OB)
    a("s_waitcnt lgkmcnt(0)")
    a("s_barrier")
    stamp(a, 6)
    for sl in range(4):
        a("ds_read_b128 %s, v4 offset:%d" % (vr(48 + 4 * sl, 4), LDS_OB + sl * 1024))
    a("s_add_u32 s20, s20, 1")
    a("s_lshl_b32 s9, s3, 17")
    a("s_lshl_b32 s11, s2, 9")
    a("s_add_u32 s9, s9, s11")
    a("s_add_u32 s9, s9, %d" % RS_B)
    a("v_mov_b32 v0, s20")
    a("v_cmp_gt_u32 vcc, 8, v3")
    a("s_mov_b64 s[12:13], vcc")
    def wo_tile(i):
        for sl in range(4):
            if i == 0:
                a("s_waitcnt lgkmcnt(%d)" % (3 - sl))
            d = vr(64 + 4 * i, 4)
            mfma(a, d, vr(128 + (i * 4 + sl) * 4, 4), vr(48 + 4 * sl, 4), "0" if sl == 0 else d)
    def wo_store(i):
        for q in range(4):
            a("v_and_or_b32 v%d, v%d, s30, v0" % (64 + 4 * i + q, 64 + 4 * i + q))
        a("s_mov_b64 exec, s[12:13]")
        a("buffer_store_dwordx4 %s, v12, s[40:43], s9 offen %s" % (vr(64 + 4 * i, 4), SCO))
        a("s_mov_b64 exec, -1")
        a("s_add_u32 s9, s9, 16384")
    wo_tile(0)
    wo_tile(1)
    wo_tile(2)
    for i in range(8):
        wo_store(i)
        if i + 3 < 8:
            wo_tile(i + 3)
        elif i < 7:
            a.nop(8)
    a("s_cmp_eq_u32 s3, 0")
    a("s_cbranch_scc0 rec_wait0")
    if os.environ.get("ACKW"):
        a("s_waitcnt vmcnt(0)")
    stamp(a, 7)
    a("s_mov_b32 s10, 0")
    a.label("rec_poll_rs")
    a("s_lshl_b32 s9, s2, 14")
    a("s_add_u32 s9, s9, %d" % RS_B)
    for k in range(16):
        if k % 4 == 0 and k:
            a("s_add_u32 s9, s9, 4096")
        a("buffer_load_dwordx4 %s, v4, s[40:43], s9 offen offset:%d %s" % (vr(64 + 4 * k, 4), (k % 4) * 1024, LDO))
    a("s_add_u32 s10, s10, 1")
    a("v_mov_b32 v48, 0")
    for k in range(16):
        a("s_waitcnt vmcnt(%d)" % (15 - k))
        if os.environ.get("FINE") and k in (0, 15):
            stamp(a, 0 if k == 0 else 9)
        b = 64 + 4 * k
        a("v_xor_b32 v49, s20, v%d" % b)
        a("v_xor_b32 v50, s20, v%d" % (b + 1))
        a("v_or3_b32 v48, v48, v49, v50")
        a("v_xor_b32 v49, s20, v%d" % (b + 2))
        a("v_xor_b32 v50, s20, v%d" % (b + 3))
        a("v_or3_b32 v48, v48, v49, v50")
        if k:
            for i in range(4):
                a("v_add_f32 v%d, v%d, v%d" % (64 + i, 64 + i, b + i))
    a("v_and_b32 v48, 0xff, v48")
    a("v_cmp_eq_u32 vcc, 0, v48")
    a("s_cmp_gt_u32 s10, 0x200000")
    a("s_cbranch_scc1 rec_end2")
    a("s_cmp_eq_u64 vcc, exec")
    a("s_cbranch_scc0 rec_poll_rs")
    stamp(a, 8)
    if STAMP:
        a("s_add_u32 s75, s75, s10")
    for i in range(4):
        a("v_mov_b32 v%d, v%d" % (68 + i, 64 + i))
    a("s_nop 1")
    for i in range(4):
        a("v_permlane32_swap_b32 v%d, v%d" % (64 + i, 68 + i))
    a("s_nop 1")
    for i in range(4):
        a("v_add_f32 v%d, v%d, v%d" % (64 + i, 64 + i, 68 + i))
    for i in range(4):
        a("v_cvt_pk_bf16_f32 v%d, v%d, v%d" % (64 + i, 64 + i, 64 + i))
        a("v_lshl_or_b32 v%d, v%d, 16, v0" % (64 + i, 64 + i))
    a("s_lshl_b32 s9, s2, 6")
    a("s_add_u32 s9, s9, %d" % MEMN)
    a("s_mov_b32 exec_hi, 0")
    a("buffer_store_dwordx4 v[64:67], v14, s[40:43], s9 offen %s" % SCO)
    a("s_mov_b64 exec, -1")
    stamp(a, 9)
    a.label("rec_wait0")
    a("s_and_b32 s15, s20, 3")
    a("s_cmp_eq_u32 s15, 0")
    a("s_cbranch_scc1 rec_sig")
    a("s_barrier")
    a("s_branch rec_loop")
    a.label("rec_sig")
    a("s_lshr_b32 s14, s20, 2")
    a("s_sub_u32 s14, s14, 1")
    signal_counter(a, 14, C_REC, 96)
    a("s_branch rec_loop")
    a.label("rec_end")
    a("s_mov_b32 s14, 15")
    signal_counter(a, 14, C_REC, 96)
    if STAMP:
        a("s_or_b32 s8, s2, s3")
        a("s_cmp_eq_u32 s8, 0")
        a("s_cbranch_scc0 rec_end2")
        a("v_mov_b32 v16, 0")
        a("s_mov_b64 exec, 1")
        for i in range(12):
            a("v_mov_b32 v17, s%d" % (64 + i))
            a("buffer_store_dword v17, v16, s[48:51], 0 offen offset:%d" % (128 + 4 * i))
    a("s_branch worker_start")
    a.label("rec_end2")
    a("s_endpgm")
    return kd("rec_kernel", 512, 256)


def wait_counter(a, sidx, cbase, target, t=16):
    l = a.newlabel("wc")
    a("s_add_u32 s80, s%d, %d" % (sidx, cbase))
    a("s_lshl_b32 s80, s80, 6")
    a("s_add_u32 s80, s80, %d" % CNT)
    a("v_mov_b32 v%d, 0" % (t + 1))
    a("s_mov_b32 s82, 0")
    a.label(l)
    a("buffer_load_dword v%d, v%d, s[40:43], s80 offen %s" % (t, t + 1, RD))
    a("s_add_u32 s82, s82, 1")
    a("s_waitcnt vmcnt(0)")
    a("v_readfirstlane_b32 s81, v%d" % t)
    a("s_cmp_ge_u32 s81, %d" % target)
    a("s_cbranch_scc1 %s_ok" % l)
    a("s_cmp_gt_u32 s82, 0x400000")
    a("s_cbranch_scc1 rec_end2")
    a("s_sleep 4")
    a("s_branch %s" % l)
    a.label(l + "_ok")


def signal_counter(a, sidx, cbase, t=16):
    l = a.newlabel("sg")
    a("s_waitcnt vmcnt(0)")
    a("s_barrier")
    a("s_cmp_eq_u32 s3, 0")
    a("s_cbranch_scc0 %s" % l)
    a("s_add_u32 s80, s%d, %d" % (sidx, cbase))
    a("s_lshl_b32 s80, s80, 6")
    a("s_add_u32 s80, s80, %d" % CNT)
    a("v_mov_b32 v%d, 1" % t)
    a("v_mov_b32 v%d, 0" % (t + 1))
    a("s_mov_b64 exec, 1")
    a("buffer_atomic_add v%d, v%d, s[40:43], s80 offen" % (t, t + 1))
    a("s_mov_b64 exec, -1")
    a.label(l)


def body_qkv(a):
    a("s_cmp_eq_u32 s90, s4")
    a("s_cbranch_scc1 qkv_have_panel")
    a("s_mov_b32 s90, s4")
    a("s_barrier")
    a("s_lshl_b32 s6, s4, 17")
    a("s_lshl_b32 s7, s3, 15")
    a("s_add_u32 s6, s6, s7")
    if XN_F:
        a("s_add_u32 s6, s6, %d" % XN_F)
    for c in range(32):
        a("s_add_u32 s8, s7, %d" % (c * 1024))
        a("s_mov_b32 m0, s8")
        a("s_add_u32 s9, s6, %d" % (c * 1024))
        a("buffer_load_dwordx4 v4, s[40:43], s9 offen lds")
    a("s_waitcnt vmcnt(0)")
    a("s_barrier")
    a.label("qkv_have_panel")
    a("s_lshl_b32 s12, s11, 4")
    a("s_lshl_b32 s13, s3, 2")
    a("s_add_u32 s12, s12, s13")
    a("s_lshl_b32 s14, s12, 14")
    a("s_add_u32 s14, s14, %d" % WQKV_F)
    for j in range(4):
        a("v_add_u32 v%d, %d, v4" % (8 + j, j * 16384))
    a("s_lshr_b32 s15, s12, 3")
    a("s_and_b32 s15, s15, 31")
    a("s_and_b32 s16, s12, 7")
    a("s_cmp_ge_u32 s11, 32")
    a("s_cbranch_scc1 qkv_v")
    gemm_panel_core(a, False, 4, 5, 8, 14, 40)
    a("s_cmp_ge_u32 s11, 16")
    a("s_cselect_b32 s17, %d, 0" % (K_F - Q_F))
    a("s_add_u32 s17, s17, %d" % Q_F)
    a("s_lshl_b32 s18, s4, 20")
    a("s_add_u32 s17, s17, s18")
    a("s_lshl_b32 s18, s15, 13")
    a("s_add_u32 s17, s17, s18")
    a("s_lshl_b32 s18, s16, 10")
    a("s_add_u32 s17, s17, s18")
    for tt in range(8):
        for p in range(2):
            d = 16 + 16 * (p & 1)
            read_acc_pack(a, d, (tt * 4 + 2 * p) * 4, (tt * 4 + 2 * p + 1) * 4)
            off = (tt // 2) * 262144 + p * 2048 + (tt % 2) * 1024
            a("s_add_u32 s18, s17, %d" % off)
            a("buffer_store_dwordx4 %s, v4, s[40:43], s18 offen %s" % (vr(d, 4), WT))
    a("s_branch qkv_sig")
    a.label("qkv_v")
    gemm_panel_core(a, True, 4, 5, 8, 14, 40)
    a("s_lshl_b32 s17, s4, 20")
    a("s_add_u32 s17, s17, %d" % V_F)
    a("s_lshl_b32 s18, s15, 13")
    a("s_add_u32 s17, s17, s18")
    a("s_lshl_b32 s18, s16, 10")
    a("s_add_u32 s17, s17, s18")
    for sg in range(4):
        for j in range(4):
            d = 16 + 16 * (j & 1)
            read_acc_pack(a, d, ((2 * sg) * 4 + j) * 4, ((2 * sg + 1) * 4 + j) * 4)
            off = sg * 262144 + j * 1024
            a("s_add_u32 s18, s17, %d" % off)
            a("buffer_store_dwordx4 %s, v4, s[40:43], s18 offen %s" % (vr(d, 4), WT))
    a.label("qkv_sig")
    a("s_cmp_ge_u32 s11, 16")
    a("s_cselect_b32 s19, %d, %d" % (C_KV, C_QD))
    a("s_add_u32 s19, s19, s4")
    signal_counter(a, 19, 0)


def body_attn(a):
    wait_counter(a, 4, C_REC, 32)
    wait_counter(a, 4, C_KV, 32)
    wait_counter(a, 4, C_QD, 16)
    a("s_lshl_b32 s6, s4, 7")
    a("s_lshl_b32 s7, s5, 2")
    a("s_add_u32 s6, s6, s7")
    a("s_add_u32 s10, s6, s3")
    a("s_lshl_b32 s11, s10, 13")
    a("s_lshl_b32 s12, s10, 12")
    def ld(dst, base, n):
        for c in range(n):
            if c % 4 == 0:
                a("s_add_u32 s7, s%d, %d" % (base[0], base[1] + c * 1024))
            a("buffer_load_dwordx4 %s, v4, s[40:43], s7 offen offset:%d %s" % (vr(dst + 4 * c, 4), (c % 4) * 1024, RD))
    ld(32, (11, Q_F), 8)
    ld(64, (11, K_F), 8)
    ld(96, (12, KM_F), 4)
    ld(112, (11, V_F), 8)
    ld(144, (11, VM_F), 8)
    a("s_waitcnt vmcnt(16)")
    for tq in range(2):
        for sl in range(4):
            q = vr(32 + (sl * 2 + tq) * 4, 4)
            for jt in range(2):
                d = vr(176 + tq * 12 + jt * 4, 4)
                mfma(a, d, vr(64 + (sl * 2 + jt) * 4, 4), q, "0" if sl == 0 else d)
            d = vr(176 + tq * 12 + 8, 4)
            mfma(a, d, vr(96 + sl * 4, 4), q, "0" if sl == 0 else d)
    a.nop(8)
    a("v_mov_b32 v8, 0xce6e6b28")
    a("v_lshlrev_b32 v9, 2, v2")
    a("v_add_u32 v11, 64, v3")
    for tq in range(2):
        S = 176 + tq * 12
        for i in range(12):
            scale_round(a, S + i, 0)
        for idx in range(8):
            koff = 16 * (idx // 4) + idx % 4 - 16 * tq
            if koff <= -16:
                continue
            a("v_add_u32 v10, %d, v9" % (koff + 64))
            a("v_cmp_le_u32 vcc, v10, v11")
            a("s_nop 1")
            a("v_cndmask_b32 v%d, v8, v%d, vcc" % (S + idx, S + idx))
        a("v_cmp_gt_u32 vcc, 2, v2")
        a("s_nop 1")
        for i in range(8, 12):
            a("v_cndmask_b32 v%d, v8, v%d, vcc" % (S + i, S + i))
        for l in softmax12_list(S, 12, 13, 14, 15, 16, 200 + tq * 8, 204 + tq * 8):
            a(l)
        a("v_mov_b32 v%d, 0" % (206 + tq * 8))
        a("v_mov_b32 v%d, 0" % (207 + tq * 8))
    a("s_waitcnt vmcnt(0)")
    a.nop(2)
    for et in range(8):
        for tq in range(2):
            d = vr(32 + (et * 2 + tq) * 4, 4)
            mfma(a, d, vr(112 + et * 4, 4), vr(200 + tq * 8, 4), "0")
            mfma(a, d, vr(144 + et * 4, 4), vr(204 + tq * 8, 4), d)
    a.nop(8)
    a("s_lshr_b32 s7, s10, 5")
    a("s_and_b32 s8, s10, 31")
    a("s_lshl_b32 s7, s7, 18")
    a("s_lshl_b32 s8, s8, 12")
    a("s_add_u32 s7, s7, s8")
    a("s_add_u32 s7, s7, %d" % O_F)
    a("s_add_u32 s8, s7, 131072")
    for p in range(4):
        for tq in range(2):
            b0 = 32 + ((2 * p) * 2 + tq) * 4
            b1 = 32 + ((2 * p + 1) * 2 + tq) * 4
            d = 216 + ((p * 2 + tq) % 4) * 4
            a("v_cvt_pk_bf16_f32 v%d, v%d, v%d" % (d, b0, b0 + 1))
            a("v_cvt_pk_bf16_f32 v%d, v%d, v%d" % (d + 1, b0 + 2, b0 + 3))
            a("v_cvt_pk_bf16_f32 v%d, v%d, v%d" % (d + 2, b1, b1 + 1))
            a("v_cvt_pk_bf16_f32 v%d, v%d, v%d" % (d + 3, b1 + 2, b1 + 3))
            a("buffer_store_dwordx4 %s, v4, s[40:43], s%d offen offset:%d %s" % (vr(d, 4), 7 + tq, p * 1024, WT))
    signal_counter(a, 4, C_AT)


def body_splitk(a, name, nks, A_F, B_F, res_is_x):
    per = nks // 4
    if res_is_x:
        wait_counter(a, 4, C_AT, 32)
    else:
        wait_counter(a, 4, C_F1, 14)
    a("s_mov_b32 s90, -1")
    a("s_barrier")
    a("s_lshr_b32 s10, s5, 3")
    a("s_lshl_b32 s11, s4, 1")
    a("s_add_u32 s10, s10, s11")
    a("s_and_b32 s11, s5, 7")
    a("s_mul_i32 s6, s10, %d" % (4 * nks * 1024))
    a("s_mul_i32 s7, s3, %d" % (per * 1024))
    a("s_add_u32 s6, s6, s7")
    a("s_add_u32 s6, s6, %d" % A_F)
    a("s_mul_i32 s8, s11, %d" % (4 * nks * 1024))
    a("s_add_u32 s8, s8, s7")
    a("s_add_u32 s8, s8, %d" % B_F)
    for i in range(4):
        a("v_add_u32 v%d, %d, v4" % (8 + i, i * nks * 1024))
    def ld(ks):
        buf = 32 + (ks % 3) * 32
        for i in range(4):
            a("buffer_load_dwordx4 %s, v%d, s[40:43], s6 offen offset:%d %s" % (vr(buf + 4 * i, 4), 8 + i, (ks % 4) * 1024, RD))
        for i in range(4):
            a("buffer_load_dwordx4 %s, v%d, s[40:43], s8 offen offset:%d" % (vr(buf + 16 + 4 * i, 4), 8 + i, (ks % 4) * 1024))
        if ks % 4 == 3:
            a("s_add_u32 s6, s6, 4096")
            a("s_add_u32 s8, s8, 4096")
    ld(0)
    ld(1)
    for ks in range(per):
        if ks + 2 < per:
            ld(ks + 2)
        a("s_waitcnt vmcnt(%d)" % (8 * min(2, per - 1 - ks)))
        buf = 32 + (ks % 3) * 32
        for i in range(4):
            for j in range(4):
                d = vr(128 + (i * 4 + j) * 4, 4)
                mfma(a, d, vr(buf + 16 + 4 * j, 4), vr(buf + 4 * i, 4), "0" if ks == 0 else d)
    a.nop(8)
    a("s_cmp_eq_u32 s3, 0")
    a("s_cbranch_scc1 %s_w0" % name)
    a("s_sub_u32 s9, s3, 1")
    a("s_lshl_b32 s9, s9, 14")
    a("v_add_u32 v5, s9, v4")
    for t in range(16):
        a("ds_write_b128 v5, %s offset:%d" % (vr(128 + 4 * t, 4), t * 1024))
    a("s_waitcnt lgkmcnt(0)")
    a("s_barrier")
    a("s_branch %s_fin" % name)
    a.label("%s_w0" % name)
    a("v_lshlrev_b32 v6, 10, v3")
    a("v_lshl_add_u32 v6, v2, 3, v6")
    a("s_lshl_b32 s9, s10, 16")
    a("s_lshl_b32 s12, s11, 7")
    a("s_add_u32 s9, s9, s12")
    rsrd = 44 if res_is_x else 40
    if not res_is_x:
        a("s_add_u32 s13, s9, %d" % H_B)
    else:
        a("s_mov_b32 s13, s9")
    for i in range(4):
        for j in range(4):
            if j == 0:
                a("s_add_u32 s12, s13, %d" % (i * 16384))
            a("buffer_load_dwordx2 %s, v6, s[%d:%d], s12 offen offset:%d %s" % (vr(192 + (i * 4 + j) * 2, 2), rsrd, rsrd + 3, j * 32, "" if res_is_x else RD))
    a("s_barrier")
    for t in range(16):
        for w in range(3):
            a("ds_read_b128 %s, v4 offset:%d" % (vr(32 + w * 4, 4), w * 16384 + t * 1024))
        a("s_waitcnt lgkmcnt(0)")
        for i in range(4):
            a("v_add_f32 v%d, v%d, v%d" % (32 + i, 32 + i, 36 + i))
            a("v_add_f32 v%d, v%d, v%d" % (128 + 4 * t + i, 128 + 4 * t + i, 40 + i))
            a("v_add_f32 v%d, v%d, v%d" % (128 + 4 * t + i, 128 + 4 * t + i, 32 + i))
    a("s_waitcnt vmcnt(0)")
    if res_is_x:
        a("s_add_u32 s13, s9, %d" % H_B)
        osrd = 40
    else:
        a("s_mov_b32 s13, s9")
        osrd = 52
    for i in range(4):
        for j in range(4):
            t = i * 4 + j
            acc = 128 + 4 * t
            rr = 192 + 2 * t
            for q in range(4):
                round_bf16(a, acc + q, acc + q)
            a("v_lshlrev_b32 v32, 16, v%d" % rr)
            a("v_and_b32 v33, 0xffff0000, v%d" % rr)
            a("v_lshlrev_b32 v34, 16, v%d" % (rr + 1))
            a("v_and_b32 v35, 0xffff0000, v%d" % (rr + 1))
            for q in range(4):
                a("v_add_f32 v%d, v%d, v%d" % (acc + q, acc + q, 32 + q))
            a("v_cvt_pk_bf16_f32 v%d, v%d, v%d" % (rr, acc, acc + 1))
            a("v_cvt_pk_bf16_f32 v%d, v%d, v%d" % (rr + 1, acc + 2, acc + 3))
            if j == 0:
                a("s_add_u32 s12, s13, %d" % (i * 16384))
            a("buffer_store_dwordx2 %s, v6, s[%d:%d], s12 offen offset:%d %s" % (vr(rr, 2), osrd, osrd + 3, j * 32, WT if res_is_x else ""))
    a.label("%s_fin" % name)
    a("v_add_u32 v5, 0x10000, v4")
    if res_is_x:
        signal_counter(a, 4, C_WO)


def body_ffn1(a):
    wait_counter(a, 4, C_WO, 16)
    a("s_mov_b32 s90, -1")
    a("s_barrier")
    a("v_xor_b32 v6, 16, v1")
    a("v_lshlrev_b32 v6, 2, v6")
    a("v_xor_b32 v7, 32, v1")
    a("v_lshlrev_b32 v7, 2, v7")
    a("v_lshlrev_b32 v8, 10, v3")
    a("v_lshl_add_u32 v8, v2, 4, v8")
    for half in range(2):
        a("s_lshl_b32 s6, s4, 17")
        a("s_lshl_b32 s7, s3, 15")
        a("s_add_u32 s7, s7, %d" % (half * 16384))
        a("s_add_u32 s6, s6, s7")
        a("s_add_u32 s6, s6, %d" % H_B)
        for kk in range(16):
            a("buffer_load_dwordx4 %s, v8, s[40:43], s6 offen offset:%d %s" % (vr(32 + 4 * kk, 4), kk * 64, RD))
        a("s_waitcnt vmcnt(0)")
        layernorm_rows(a, 32, 16, 96, 16, 6, 7)
        a("v_add_u32 v9, s7, v4")
        for kk in range(16):
            a("ds_write_b128 v9, %s offset:%d" % (vr(32 + 4 * kk, 4), kk * 1024))
    a("s_waitcnt lgkmcnt(0)")
    a("s_barrier")
    a("s_lshl_b32 s12, s5, 3")
    a("s_lshl_b32 s13, s3, 1")
    a("s_add_u32 s12, s12, s13")
    a("s_lshl_b32 s14, s12, 14")
    a("s_add_u32 s14, s14, %d" % WGU_F)
    a("v_mov_b32 v8, v4")
    a("v_add_u32 v9, 16384, v4")
    a("v_add_u32 v10, %d, v4" % (112 * 16384))
    a("v_add_u32 v11, %d, v4" % (113 * 16384))
    gemm_panel_core(a, False, 4, 5, 8, 14, 40)
    a("s_lshl_b32 s17, s4, 3")
    a("s_mul_i32 s17, s17, %d" % (56 * 1024))
    a("s_lshl_b32 s18, s12, 9")
    a("s_add_u32 s17, s17, s18")
    a("s_add_u32 s17, s17, %d" % ACT_F)
    for tt in range(8):
        for i in range(4):
            a("v_accvgpr_read_b32 v%d, a%d" % (16 + i, (tt * 4 + 0) * 4 + i))
            a("v_accvgpr_read_b32 v%d, a%d" % (20 + i, (tt * 4 + 1) * 4 + i))
            a("v_accvgpr_read_b32 v%d, a%d" % (24 + i, (tt * 4 + 2) * 4 + i))
            a("v_accvgpr_read_b32 v%d, a%d" % (28 + i, (tt * 4 + 3) * 4 + i))
        for i in range(16):
            round_bf16(a, 16 + i, 16 + i)
        for i in range(8):
            a("v_mul_f32 v%d, v%d, v%d" % (16 + i, 16 + i, 24 + i))
        d = 32 + (tt % 2) * 4
        for i in range(4):
            a("v_cvt_pk_bf16_f32 v%d, v%d, v%d" % (d + i, 16 + 2 * i, 17 + 2 * i))
        a("buffer_store_dwordx4 %s, v4, s[40:43], s17 offen %s" % (vr(d, 4), WT))
        a("s_add_u32 s17, s17, %d" % (56 * 1024))
    signal_counter(a, 4, C_F1)


N_T1 = 768
PER_TB = 78
N_TASK = N_T1 + 16 * PER_TB
LDS_BCAST = 163840 - 64


def gen_worker(a):
    a.label("worker_start")
    a("s_load_dwordx2 s[24:25], s[0:1], %d" % KA_X)
    a("s_load_dwordx2 s[26:27], s[0:1], %d" % KA_OUT)
    a("s_waitcnt lgkmcnt(0)")
    srd(a, 44, 24, 2048 * 512 * 2)
    srd(a, 52, 26, 2048 * 512 * 2)
    a("s_mov_b32 s90, -1")
    a("v_add_u32 v5, 0x10000, v4")
    a.label("worker_loop")
    a("v_mov_b32 v18, %d" % LDS_BCAST)
    a("s_cmp_eq_u32 s3, 0")
    a("s_cbranch_scc0 worker_t1")
    a("v_mov_b32 v16, 1")
    a("v_mov_b32 v17, 0")
    a("s_mov_b32 s80, %d" % (CNT + 64 * C_QUEUE))
    a("s_mov_b64 exec, 1")
    a("buffer_atomic_add v16, v17, s[40:43], s80 offen sc0")
    a("s_waitcnt vmcnt(0)")
    a("ds_write_b32 v18, v16")
    a("s_waitcnt lgkmcnt(0)")
    a("s_mov_b64 exec, -1")
    a.label("worker_t1")
    a("s_barrier")
    a("ds_read_b32 v16, v18")
    a("s_waitcnt lgkmcnt(0)")
    a("v_readfirstlane_b32 s91, v16")
    a("s_barrier")
    a("s_cmp_ge_u32 s91, %d" % N_TASK)
    a("s_cbranch_scc1 rec_end2")
    a("s_cmp_ge_u32 s91, %d" % N_T1)
    a("s_cbranch_scc1 worker_stage")
    a("s_mul_hi_u32 s4, s91, %d" % ((1 << 32) // 48 + 1))
    a("s_mul_i32 s5, s4, 48")
    a("s_sub_u32 s5, s91, s5")
    a("s_add_u32 s11, s5, 16")
    a("s_cmp_ge_u32 s11, 48")
    a("s_cselect_b32 s5, 48, 0")
    a("s_sub_u32 s11, s11, s5")
    body_qkv(a)
    a("s_branch worker_loop")
    a.label("worker_stage")
    a("s_sub_u32 s5, s91, %d" % N_T1)
    a("s_mul_hi_u32 s4, s5, %d" % ((1 << 32) // PER_TB + 1))
    a("s_mul_i32 s6, s4, %d" % PER_TB)
    a("s_sub_u32 s5, s5, s6")
    a("s_cmp_ge_u32 s5, 32")
    a("s_cbranch_scc1 worker_s3")
    body_attn(a)
    a("s_branch worker_loop")
    a.label("worker_s3")
    a("s_sub_u32 s5, s5, 32")
    a("s_cmp_ge_u32 s5, 16")
    a("s_cbranch_scc1 worker_s4")
    body_splitk(a, "wo", 128, O_F, WO_F, True)
    a("s_branch worker_loop")
    a.label("worker_s4")
    a("s_sub_u32 s5, s5, 16")
    a("s_cmp_ge_u32 s5, 14")
    a("s_cbranch_scc1 worker_s5")
    body_ffn1(a)
    a("s_branch worker_loop")
    a.label("worker_s5")
    a("s_sub_u32 s5, s5, 14")
    body_splitk(a, "f2", 56, ACT_F, WD_F, False)
    a("s_branch worker_loop")


def main():
    a = A()
    hdr = []
    ref = open("cdna_kernels/%s.s.ref" % NAME).read().split("\n")
    for l in ref:
        if l.startswith("; @launch") or l.startswith("; Override") or l.startswith("; grid="):
            continue
        if l.startswith(";"):
            hdr.append(l)
        else:
            break
    launches = [
        ("prep_kernel", (N_PREP + 3) // 4, 0),
        ("rec_kernel", 256, REC_LDS),
    ]
    for n, g, lds in launches:
        hdr.append("; @launch kernel=%s grid=(%d,1,1) block=(256,1,1) lds=%d" % (n, g, lds))
    kds = []
    kds.append(gen_prep(a))
    kds.append(gen_rec(a))
    gen_worker(a)
    out = "\n".join(hdr) + "\n"
    out += '.amdgcn_target "amdgcn-amd-amdhsa--gfx950"\n.text\n'
    out += a.text()
    out += '.section .rodata,"a"\n'
    for k in kds:
        out += ".p2align 6\n" + k
    path = sys.argv[1] if len(sys.argv) > 1 else "cdna_kernels/%s.s" % NAME
    open(path, "w").write(out)
    print("wrote", path, len(out), "bytes")


main()
```

```python
import sys
import os

NAME = "sequential_preLN__memory_aug_recurrent_mem_tr__glu_gated_bilinear__prompt"
MB = 1 << 20
XN_F = 0
WQKV_F = 2 * MB
WO_F = 14 * MB
WGU_F = 18 * MB
WD_F = 22 * MB
Q_F = 24 * MB
K_F = 40 * MB
V_F = 56 * MB
KM_F = 72 * MB
VM_F = 80 * MB
O_F = 96 * MB
H_B = 112 * MB
ACT_F = 114 * MB
RS_B = 124 * MB
MEMN = 125 * MB
CNT = 126 * MB
C_QUEUE, C_KV, C_QD, C_REC, C_AT, C_WO, C_F1 = 0, 1, 17, 33, 49, 65, 81
WS_BYTES = 256 * MB
WT = "sc0 sc1"
RD = "sc1"

KA_X, KA_MEM0, KA_WQ, KA_WK, KA_WV, KA_WO, KA_SEG, KA_BX, KA_WG, KA_WU, KA_WD, KA_OUT, KA_DBG, KA_WS = [8 * i for i in range(14)]


class A:
    def __init__(self):
        self.lines = []
        self.uid = 0

    def __call__(self, s):
        for l in s.strip("\n").split("\n"):
            self.lines.append("    " + l.strip())

    def label(self, name):
        self.lines.append(name + ":")

    def newlabel(self, p="L"):
        self.uid += 1
        return "%s_%d" % (p, self.uid)

    def nop(self, n):
        while n > 0:
            k = min(n, 16)
            self("s_nop %d" % (k - 1))
            n -= k

    def text(self):
        return "\n".join(self.lines) + "\n"


def srd(a, s, ptr_lo, nbytes):
    a("s_mov_b32 s%d, s%d" % (s, ptr_lo))
    a("s_and_b32 s%d, s%d, 0xffff" % (s + 1, ptr_lo + 1))
    a("s_mov_b32 s%d, %d" % (s + 2, nbytes))
    a("s_mov_b32 s%d, 0x00020000" % (s + 3))


def vr(b, n=1):
    return "v%d" % b if n == 1 else "v[%d:%d]" % (b, b + n - 1)


def ar(b, n=1):
    return "a%d" % b if n == 1 else "a[%d:%d]" % (b, b + n - 1)


def mfma(a, d, x, y, c):
    a("v_mfma_f32_16x16x32_bf16 %s, %s, %s, %s" % (d, x, y, c))


def kernel_begin(a, name):
    a.lines.append(".globl %s" % name)
    a.lines.append(".p2align 8")
    a.lines.append(".type %s,@function" % name)
    a.label(name)


def kd(name, vgpr, accum, sgpr=102):
    return """.amdhsa_kernel %s
  .amdhsa_next_free_vgpr %d
  .amdhsa_next_free_sgpr %d
  .amdhsa_accum_offset %d
  .amdhsa_group_segment_fixed_size 0
  .amdhsa_kernarg_size 112
  .amdhsa_user_sgpr_count 2
  .amdhsa_user_sgpr_kernarg_segment_ptr 1
  .amdhsa_system_sgpr_workgroup_id_x 1
.end_amdhsa_kernel
""" % (name, vgpr, sgpr, accum)


def lane_setup(a, vlane=1, vg=2, vr_=3, swave=3):
    a("v_lshrrev_b32 v%d, 6, v0" % vlane)
    a("s_nop 0")
    a("v_readfirstlane_b32 s%d, v%d" % (swave, vlane))
    a("v_and_b32 v%d, 63, v0" % vlane)
    a("v_lshrrev_b32 v%d, 4, v%d" % (vg, vlane))
    a("v_and_b32 v%d, 15, v%d" % (vr_, vlane))


def round_bf16(a, dst, src):
    a("v_cvt_pk_bf16_f32 v%d, v%d, v%d" % (dst, src, src))
    a("v_lshlrev_b32 v%d, 16, v%d" % (dst, dst))


def xlane_sum4(a, v, tmp, vaddr16, vaddr32):
    a("ds_bpermute_b32 v%d, v%d, v%d" % (tmp, vaddr16, v))
    a("s_waitcnt lgkmcnt(0)")
    a("v_add_f32 v%d, v%d, v%d" % (v, v, tmp))
    a("ds_bpermute_b32 v%d, v%d, v%d" % (tmp, vaddr32, v))
    a("s_waitcnt lgkmcnt(0)")
    a("v_add_f32 v%d, v%d, v%d" % (v, v, tmp))


def xlane_max4(a, v, tmp, vaddr16, vaddr32):
    a("ds_bpermute_b32 v%d, v%d, v%d" % (tmp, vaddr16, v))
    a("s_waitcnt lgkmcnt(0)")
    a("v_max_f32 v%d, v%d, v%d" % (v, v, tmp))
    a("ds_bpermute_b32 v%d, v%d, v%d" % (tmp, vaddr32, v))
    a("s_waitcnt lgkmcnt(0)")
    a("v_max_f32 v%d, v%d, v%d" % (v, v, tmp))


def layernorm_rows(a, raw, nk, f32, tmp, vaddr16, vaddr32):
    n = nk * 8
    t0, t1, t2, t3, t4, t5 = [tmp + i for i in range(6)]
    for i in range(nk * 4):
        a("v_lshlrev_b32 v%d, 16, v%d" % (f32 + 2 * i, raw + i))
        a("v_and_b32 v%d, 0xffff0000, v%d" % (f32 + 2 * i + 1, raw + i))
    a("v_add_f32 v%d, v%d, v%d" % (t0, f32, f32 + 1))
    for i in range(2, n):
        a("v_add_f32 v%d, v%d, v%d" % (t0, t0, f32 + i))
    xlane_sum4(a, t0, t1, vaddr16, vaddr32)
    a("v_mul_f32 v%d, 0x3b000000, v%d" % (t0, t0))
    a("v_mov_b32 v%d, 0" % t2)
    for i in range(n):
        a("v_sub_f32 v%d, v%d, v%d" % (t1, f32 + i, t0))
        a("v_fmac_f32 v%d, v%d, v%d" % (t2, t1, t1))
    xlane_sum4(a, t2, t1, vaddr16, vaddr32)
    a("v_mul_f32 v%d, 0x3b000000, v%d" % (t2, t2))
    round_bf16(a, t0, t0)
    round_bf16(a, t2, t2)
    a("v_add_f32 v%d, 0x3727c5ac, v%d" % (t2, t2))
    round_bf16(a, t2, t2)
    a("v_sqrt_f32 v%d, v%d" % (t2, t2))
    a("s_nop 0")
    round_bf16(a, t2, t2)
    a("v_rcp_f32 v%d, v%d" % (t3, t2))
    a("s_nop 0")
    a("v_fma_f32 v%d, -v%d, v%d, 2.0" % (t4, t2, t3))
    a("v_mul_f32 v%d, v%d, v%d" % (t3, t3, t4))
    for i in range(nk * 4):
        lo, hi = f32 + 2 * i, f32 + 2 * i + 1
        a("v_sub_f32 v%d, v%d, v%d" % (lo, lo, t0))
        a("v_sub_f32 v%d, v%d, v%d" % (hi, hi, t0))
        a("v_cvt_pk_bf16_f32 v%d, v%d, v%d" % (t4, lo, hi))
        a("v_lshlrev_b32 v%d, 16, v%d" % (lo, t4))
        a("v_and_b32 v%d, 0xffff0000, v%d" % (hi, t4))
        a("v_mul_f32 v%d, v%d, v%d" % (lo, lo, t3))
        a("v_mul_f32 v%d, v%d, v%d" % (hi, hi, t3))
        a("v_cvt_pk_bf16_f32 v%d, v%d, v%d" % (raw + i, lo, hi))


N_QKV = 3072
N_WO = 1024
N_GU = 896
N_WD = 448
N_W = N_QKV + N_WO + N_GU + N_WD
N_ZERO = 512 + 16 + 8
N_PREP = N_W + 128 + N_ZERO
PREP_LDS = 4 * 4608


def gen_prep(a):
    kernel_begin(a, "prep_kernel")
    a("s_load_dwordx4 s[4:7], s[0:1], %d" % KA_WQ)
    a("s_load_dwordx4 s[12:15], s[0:1], %d" % KA_WV)
    a("s_load_dwordx4 s[16:19], s[0:1], %d" % KA_WG)
    a("s_load_dwordx2 s[20:21], s[0:1], %d" % KA_WD)
    a("s_load_dwordx2 s[22:23], s[0:1], %d" % KA_WS)
    a("s_load_dwordx2 s[32:33], s[0:1], %d" % KA_X)
    lane_setup(a)
    a("s_lshl_b32 s31, s2, 2")
    a("s_add_u32 s31, s31, s3")
    a("s_waitcnt lgkmcnt(0)")
    srd(a, 40, 22, WS_BYTES)
    a("s_cmp_ge_u32 s31, %d" % N_PREP)
    a("s_cbranch_scc1 prep_end")
    a("s_cmp_ge_u32 s31, %d" % (N_W + 128))
    a("s_cbranch_scc1 prep_zero")
    a("s_cmp_ge_u32 s31, %d" % N_W)
    a("s_cbranch_scc1 prep_ln")
    a("s_cmp_ge_u32 s31, %d" % N_QKV)
    a("s_cbranch_scc1 prep_c1")
    a("s_lshr_b32 s34, s31, 10")
    a("s_mov_b64 s[24:25], s[4:5]")
    a("s_cmp_eq_u32 s34, 1")
    a("s_cselect_b64 s[24:25], s[6:7], s[24:25]")
    a("s_cmp_eq_u32 s34, 2")
    a("s_cselect_b64 s[24:25], s[12:13], s[24:25]")
    a("s_mov_b32 s26, %d" % (512 * 4096 * 2))
    a("s_mov_b32 s27, 8192")
    a("s_lshr_b32 s35, s31, 4")
    a("s_and_b32 s35, s35, 63")
    a("s_and_b32 s36, s31, 15")
    a("s_mov_b32 s37, 16")
    a("s_mov_b32 s29, 0")
    a("s_lshl_b32 s30, s34, 22")
    a("s_add_u32 s30, s30, %d" % WQKV_F)
    a("s_branch prep_go")
    a.label("prep_c1")
    a("s_cmp_ge_u32 s31, %d" % (N_QKV + N_WO))
    a("s_cbranch_scc1 prep_c2")
    a("s_sub_u32 s34, s31, %d" % N_QKV)
    a("s_mov_b64 s[24:25], s[14:15]")
    a("s_mov_b32 s26, %d" % (4096 * 512 * 2))
    a("s_mov_b32 s27, 1024")
    a("s_lshr_b32 s35, s34, 7")
    a("s_and_b32 s36, s34, 127")
    a("s_mov_b32 s37, 128")
    a("s_mov_b32 s29, 1")
    a("s_mov_b32 s30, %d" % WO_F)
    a("s_branch prep_go")
    a.label("prep_c2")
    a("s_cmp_ge_u32 s31, %d" % (N_QKV + N_WO + N_GU))
    a("s_cbranch_scc1 prep_c3")
    a("s_sub_u32 s34, s31, %d" % (N_QKV + N_WO))
    a("s_mov_b64 s[24:25], s[16:17]")
    a("s_mov_b32 s30, %d" % WGU_F)
    a("s_cmp_ge_u32 s34, 448")
    a("s_cselect_b64 s[24:25], s[18:19], s[24:25]")
    a("s_cselect_b32 s37, 448, 0")
    a("s_cselect_b32 s38, %d, 0" % (112 * 16384))
    a("s_sub_u32 s34, s34, s37")
    a("s_add_u32 s30, s30, s38")
    a("s_mov_b32 s26, %d" % (512 * 1792 * 2))
    a("s_mov_b32 s27, 3584")
    a("s_lshr_b32 s35, s34, 4")
    a("s_and_b32 s36, s34, 15")
    a("s_mov_b32 s37, 16")
    a("s_mov_b32 s29, 0")
    a("s_branch prep_go")
    a.label("prep_c3")
    a("s_sub_u32 s34, s31, %d" % (N_QKV + N_WO + N_GU))
    a("s_mov_b32 s30, %d" % WD_F)
    a("s_mov_b64 s[24:25], s[20:21]")
    a("s_mov_b32 s26, %d" % (1792 * 512 * 2))
    a("s_mov_b32 s27, 1024")
    a("s_mul_hi_u32 s35, s34, %d" % ((1 << 32) // 56 + 1))
    a("s_mul_i32 s37, s35, 56")
    a("s_sub_u32 s36, s34, s37")
    a("s_mov_b32 s37, 56")
    a("s_mov_b32 s29, 1")
    a.label("prep_go")
    a("s_mul_i32 s28, s36, s27")
    a("s_lshl_b32 s28, s28, 5")
    a("s_lshl_b32 s38, s35, 7")
    a("s_add_u32 s28, s28, s38")
    a("s_mov_b32 s8, s24")
    a("s_and_b32 s9, s25, 0xffff")
    a("s_mov_b32 s10, s26")
    a("s_mov_b32 s11, 0x00020000")
    a("v_lshrrev_b32 v4, 3, v1")
    a("v_mul_lo_u32 v5, v4, s27")
    a("v_and_b32 v6, 7, v1")
    a("v_lshl_add_u32 v5, v6, 4, v5")
    a("s_lshl_b32 s38, s27, 3")
    for i in range(4):
        a("buffer_load_dwordx4 %s, v5, s[8:11], s28 offen" % vr(16 + 4 * i, 4))
        if i < 3:
            a("s_add_u32 s28, s28, s38")
    a("s_mul_i32 s39, s3, 4608")
    a("v_mul_u32_u24 v7, 144, v4")
    a("v_lshl_add_u32 v7, v6, 4, v7")
    a("v_add_u32 v7, s39, v7")
    a("s_cmp_eq_u32 s29, 1")
    a("s_cselect_b32 s44, 2, 3")
    a("s_cselect_b32 s45, 16, 4")
    a("s_mul_i32 s45, s45, 144")
    a("v_lshlrev_b32 v8, s44, v2")
    a("v_lshrrev_b32 v9, 2, v3")
    a("v_add_u32 v8, v8, v9")
    a("v_mul_u32_u24 v8, 144, v8")
    a("v_and_b32 v9, 3, v1")
    a("v_lshl_add_u32 v8, v9, 3, v8")
    a("v_add_u32 v8, s39, v8")
    a("v_add_u32 v9, s45, v8")
    a("s_lshl_b32 s38, s35, 2")
    a("s_mul_i32 s38, s38, s37")
    a("s_add_u32 s38, s38, s36")
    a("s_lshl_b32 s38, s38, 10")
    a("s_add_u32 s30, s30, s38")
    a("s_lshl_b32 s37, s37, 10")
    a("v_lshlrev_b32 v5, 4, v1")
    for i in range(4):
        a("s_waitcnt vmcnt(%d)" % (3 - i))
        a("ds_write_b128 v7, %s offset:%d" % (vr(16 + 4 * i, 4), i * 8 * 144))
    a("s_waitcnt lgkmcnt(0)")
    for j in range(4):
        a("ds_read_b64_tr_b16 %s, v8 offset:%d" % (vr(32 + 4 * j, 2), j * 32))
        a("ds_read_b64_tr_b16 %s, v9 offset:%d" % (vr(34 + 4 * j, 2), j * 32))
    for j in range(4):
        a("s_waitcnt lgkmcnt(%d)" % (6 - 2 * j))
        a("buffer_store_dwordx4 %s, v5, s[40:43], s30 offen" % vr(32 + 4 * j, 4))
        if j < 3:
            a("s_add_u32 s30, s30, s37")
    a("s_branch prep_end")
    a.label("prep_ln")
    a("s_sub_u32 s34, s31, %d" % N_W)
    srd(a, 8, 32, 2048 * 512 * 2)
    a("v_lshlrev_b32 v4, 10, v3")
    a("v_lshl_add_u32 v4, v2, 4, v4")
    a("s_lshl_b32 s35, s34, 14")
    for kk in range(16):
        a("buffer_load_dwordx4 %s, v4, s[8:11], s35 offen offset:%d" % (vr(16 + 4 * kk, 4), kk * 64))
    a("v_xor_b32 v5, 16, v1")
    a("v_lshlrev_b32 v5, 2, v5")
    a("v_xor_b32 v6, 32, v1")
    a("v_lshlrev_b32 v6, 2, v6")
    a("s_waitcnt vmcnt(0)")
    layernorm_rows(a, 16, 16, 96, 8, 5, 6)
    a("v_lshlrev_b32 v5, 4, v1")
    a("s_add_u32 s35, s35, %d" % XN_F)
    for kk in range(16):
        if kk % 4 == 0 and kk:
            a("s_add_u32 s35, s35, 4096")
        a("buffer_store_dwordx4 %s, v5, s[40:43], s35 offen offset:%d" % (vr(16 + 4 * kk, 4), (kk % 4) * 1024))
    a("s_branch prep_end")
    a.label("prep_zero")
    a("s_sub_u32 s34, s31, %d" % (N_W + 128))
    a("s_lshl_b32 s35, s34, 10")
    a("s_cmp_ge_u32 s34, 512")
    a("s_cselect_b32 s36, %d, 0" % (MEMN - 512 * 1024 - RS_B))
    a("s_cmp_ge_u32 s34, 528")
    a("s_cselect_b32 s36, %d, s36" % (CNT - 528 * 1024 - RS_B))
    a("s_add_u32 s36, s36, %d" % RS_B)
    a("s_add_u32 s35, s35, s36")
    a("v_mov_b32 v8, 0")
    a("v_mov_b32 v9, 0")
    a("v_mov_b32 v10, 0")
    a("v_mov_b32 v11, 0")
    a("v_lshlrev_b32 v5, 4, v1")
    a("buffer_store_dwordx4 v[8:11], v5, s[40:43], s35 offen")
    a.label("prep_end")
    a("s_endpgm")
    return kd("prep_kernel", 224, 224)


ABUF = 32
BBUF = 96


def gemm_panel_core(a, swapped, vLds0, vLds1, vB, sB, srdB):
    def ldA(kk):
        buf = ABUF + (kk & 1) * 32
        for tt in range(8):
            off = tt * 16384 + kk * 1024
            base, o = (vLds0, off) if off < 65536 else (vLds1, off - 65536)
            a("ds_read_b128 %s, v%d offset:%d" % (vr(buf + 4 * tt, 4), base, o))

    def ldB(kk):
        buf = BBUF + (kk % 3) * 16
        if kk % 4 == 0 and kk:
            a("s_add_u32 s%d, s%d, 4096" % (sB, sB))
        for j in range(4):
            a("buffer_load_dwordx4 %s, v%d, s[%d:%d], s%d offen offset:%d" % (vr(buf + 4 * j, 4), vB + j, srdB, srdB + 3, sB, (kk % 4) * 1024))

    ldB(0)
    ldB(1)
    ldA(0)
    for kk in range(16):
        if kk + 2 < 16:
            ldB(kk + 2)
        if kk + 1 < 16:
            ldA(kk + 1)
        nv = 4 * min(2, 15 - kk)
        nl = 8 if kk + 1 < 16 else 0
        a("s_waitcnt vmcnt(%d) lgkmcnt(%d)" % (nv, nl))
        abuf = ABUF + (kk & 1) * 32
        bbuf = BBUF + (kk % 3) * 16
        for tt in range(8):
            for j in range(4):
                d = ar((tt * 4 + j) * 4, 4)
                c = "0" if kk == 0 else d
                x, y = vr(abuf + 4 * tt, 4), vr(bbuf + 4 * j, 4)
                if swapped:
                    mfma(a, d, x, y, c)
                else:
                    mfma(a, d, y, x, c)
    a.nop(10)


def read_acc_pack(a, dst, acc0, acc1):
    t = dst + 4
    for i in range(4):
        a("v_accvgpr_read_b32 v%d, a%d" % (t + i, acc0 + i))
        a("v_accvgpr_read_b32 v%d, a%d" % (t + 4 + i, acc1 + i))
    a("v_cvt_pk_bf16_f32 v%d, v%d, v%d" % (dst, t, t + 1))
    a("v_cvt_pk_bf16_f32 v%d, v%d, v%d" % (dst + 1, t + 2, t + 3))
    a("v_cvt_pk_bf16_f32 v%d, v%d, v%d" % (dst + 2, t + 4, t + 5))
    a("v_cvt_pk_bf16_f32 v%d, v%d, v%d" % (dst + 3, t + 6, t + 7))


def softmax12(a, S, tmp, vaddr16, vaddr32, P):
    m, t, s = tmp, tmp + 1, tmp + 2
    a("v_max3_f32 v%d, v%d, v%d, v%d" % (m, S, S + 1, S + 2))
    for i in range(3, 12, 2):
        if i + 1 < 12:
            a("v_max3_f32 v%d, v%d, v%d, v%d" % (m, m, S + i, S + i + 1))
        else:
            a("v_max_f32 v%d, v%d, v%d" % (m, m, S + i))
    xlane_max4(a, m, t, vaddr16, vaddr32)
    for i in range(12):
        a("v_sub_f32 v%d, v%d, v%d" % (S + i, S + i, m))
        a("v_mul_f32 v%d, 0x3fb8aa3b, v%d" % (S + i, S + i))
        a("v_exp_f32 v%d, v%d" % (S + i, S + i))
    a("s_nop 0")
    a("v_add_f32 v%d, v%d, v%d" % (s, S, S + 1))
    for i in range(2, 12):
        a("v_add_f32 v%d, v%d, v%d" % (s, s, S + i))
    xlane_sum4(a, s, t, vaddr16, vaddr32)
    a("v_rcp_f32 v%d, v%d" % (t, s))
    a("s_nop 0")
    a("v_fma_f32 v%d, -v%d, v%d, 2.0" % (m, s, t))
    a("v_mul_f32 v%d, v%d, v%d" % (t, t, m))
    for i in range(12):
        a("v_mul_f32 v%d, v%d, v%d" % (S + i, S + i, t))
    for i in range(6):
        a("v_cvt_pk_bf16_f32 v%d, v%d, v%d" % (P + i, S + 2 * i, S + 2 * i + 1))


def scale_round(a, v, tmp):
    round_bf16(a, v, v)
    a("v_mul_f32 v%d, 0x3db504f3, v%d" % (v, v))
    round_bf16(a, v, v)


LDS_SC = 0
LDS_OB = 12288
LDS_MF = 16384
LDS_WV = 32768
REC_LDS = 163840
SCO = os.environ.get("SCO", "")
LDO = os.environ.get("LDO", "sc1")


def xl_reduce(a, op, v, t0, t1):
    out = []
    out.append("v_mov_b32 v%d, v%d" % (t0, v))
    out.append("v_mov_b32 v%d, v%d" % (t1, v))
    out.append("s_nop 1")
    out.append("v_permlane32_swap_b32 v%d, v%d" % (t0, t1))
    out.append("s_nop 1")
    out.append("%s v%d, v%d, v%d" % (op, v, t0, t1))
    out.append("v_mov_b32 v%d, v%d" % (t0, v))
    out.append("v_mov_b32 v%d, v%d" % (t1, v))
    out.append("s_nop 1")
    out.append("v_permlane16_swap_b32 v%d, v%d" % (t0, t1))
    out.append("s_nop 1")
    out.append("%s v%d, v%d, v%d" % (op, v, t0, t1))
    return out


def softmax12_list(S, m, t, s, t0, t1, Px, Pm):
    o = []
    o.append("v_max3_f32 v%d, v%d, v%d, v%d" % (m, S, S + 1, S + 2))
    for i in range(3, 12, 2):
        if i + 1 < 12:
            o.append("v_max3_f32 v%d, v%d, v%d, v%d" % (m, m, S + i, S + i + 1))
        else:
            o.append("v_max_f32 v%d, v%d, v%d" % (m, m, S + i))
    o += xl_reduce(None, "v_max_f32", m, t0, t1)
    for i in range(12):
        o.append("v_sub_f32 v%d, v%d, v%d" % (S + i, S + i, m))
        o.append("v_mul_f32 v%d, 0x3fb8aa3b, v%d" % (S + i, S + i))
        o.append("v_exp_f32 v%d, v%d" % (S + i, S + i))
    o.append("s_nop 0")
    o.append("v_add_f32 v%d, v%d, v%d" % (s, S, S + 1))
    for i in range(2, 12):
        o.append("v_add_f32 v%d, v%d, v%d" % (s, s, S + i))
    o += xl_reduce(None, "v_add_f32", s, t0, t1)
    o.append("v_rcp_f32 v%d, v%d" % (t, s))
    o.append("s_nop 0")
    o.append("v_fma_f32 v%d, -v%d, v%d, 2.0" % (m, s, t))
    o.append("v_mul_f32 v%d, v%d, v%d" % (t, t, m))
    for i in range(12):
        o.append("v_mul_f32 v%d, v%d, v%d" % (S + i, S + i, t))
    for i in range(4):
        o.append("v_cvt_pk_bf16_f32 v%d, v%d, v%d" % (Px + i, S + 2 * i, S + 2 * i + 1))
    for i in range(2):
        o.append("v_cvt_pk_bf16_f32 v%d, v%d, v%d" % (Pm + i, S + 8 + 2 * i, S + 9 + 2 * i))
    return o


import os
STAMP = bool(os.environ.get("STAMP"))


def stamp(a, i):
    if not STAMP:
        return
    a("s_memtime s[60:61]")
    a("s_waitcnt lgkmcnt(0)")
    a("s_sub_u32 s62, s60, s63")
    a("s_add_u32 s%d, s%d, s62" % (64 + i, 64 + i))
    a("s_mov_b32 s63, s60")


TL = bool(os.environ.get("TL"))


def tl(a, slot, cond_head0=True):
    if not TL:
        return
    l = a.newlabel("tl")
    a("s_cmp_eq_u32 s3, 0")
    a("s_cbranch_scc0 %s" % l)
    a("s_memrealtime s[60:61]")
    a("s_waitcnt lgkmcnt(0)")
    a("v_mov_b32 v254, s60")
    a("v_mov_b32 v255, 0")
    a("s_mov_b64 exec, 1")
    a("buffer_atomic_umax v254, v255, s[48:51], 0 offen offset:%d" % (192 + 4 * slot))
    a("s_mov_b64 exec, -1")
    a.label(l)


def tl15(a, slot):
    if not TL:
        return
    l = a.newlabel("tlx")
    a("s_cmp_eq_u32 s4, 15")
    a("s_cbranch_scc0 %s" % l)
    tl(a, slot)
    a.label(l)


def gen_rec(a):
    kernel_begin(a, "rec_kernel")
    a("s_cmp_ge_u32 s2, 256")
    a("s_cbranch_scc1 rec_end2")
    a("s_load_dwordx2 s[22:23], s[0:1], %d" % KA_WS)
    a("s_load_dwordx2 s[24:25], s[0:1], %d" % KA_MEM0)
    a("s_load_dwordx2 s[26:27], s[0:1], %d" % KA_DBG)
    lane_setup(a)
    a("v_lshlrev_b32 v4, 4, v1")
    a("s_waitcnt lgkmcnt(0)")
    srd(a, 40, 22, WS_BYTES)
    srd(a, 44, 24, 8192)
    srd(a, 48, 26, 256)
    tl(a, 0)
    a("v_mov_b32 v18, 0")
    a("s_cmp_eq_u32 s3, 0")
    a("s_cbranch_scc0 rec_elect_done")
    a("s_getreg_b32 s5, hwreg(HW_REG_XCC_ID, 0, 4)")
    a("s_and_b32 s5, s5, 7")
    a("s_lshl_b32 s6, s5, 2")
    a("v_mov_b32 v16, 1")
    a("v_mov_b32 v17, s6")
    a("s_mov_b64 exec, 1")
    a("buffer_atomic_add v16, v17, s[48:51], 0 offen sc0")
    a("s_waitcnt vmcnt(0)")
    a("v_readfirstlane_b32 s6, v16")
    a("s_mov_b32 s7, -1")
    a("s_cmp_ge_u32 s6, 32")
    a("s_cbranch_scc1 rec_elect_pub")
    a("s_add_u32 s8, s5, 1")
    a("s_cmp_eq_u32 s6, 31")
    a("s_cbranch_scc0 rec_elect_poll")
    a("v_mov_b32 v16, s8")
    a("v_mov_b32 v17, 0")
    a("buffer_atomic_cmpswap v[16:17], v18, s[48:51], 0 offen offset:64 sc0")
    a("s_waitcnt vmcnt(0)")
    a.label("rec_elect_poll")
    a("s_sleep 1")
    a("buffer_load_dword v16, v18, s[48:51], 0 offen offset:64 sc0 sc1")
    a("s_waitcnt vmcnt(0)")
    a("v_readfirstlane_b32 s9, v16")
    a("s_cmp_eq_u32 s9, 0")
    a("s_cbranch_scc1 rec_elect_poll")
    a("s_cmp_eq_u32 s9, s8")
    a("s_cselect_b32 s7, s6, -1")
    a.label("rec_elect_pub")
    a("v_mov_b32 v16, s7")
    a("ds_write_b32 v18, v16")
    a("s_waitcnt lgkmcnt(0)")
    a("s_mov_b64 exec, -1")
    a.label("rec_elect_done")
    a("s_barrier")
    a("ds_read_b32 v16, v18")
    a("s_waitcnt lgkmcnt(0)")
    a("v_readfirstlane_b32 s2, v16")
    a("s_barrier")
    a("s_cmp_ge_u32 s2, 32")
    a("s_cbranch_scc1 worker_start")
    a("s_lshl_b32 s4, s2, 3")
    a("s_lshl_b32 s5, s3, 1")
    a("s_add_u32 s4, s4, s5")
    a("s_lshl_b32 s4, s4, 14")
    a("s_add_u32 s4, s4, %d" % WQKV_F)
    for m in range(2):
        for c in range(32):
            if c % 4 == 0:
                a("s_add_u32 s6, s4, %d" % (m * 256 * 16384 + c * 1024))
            a("buffer_load_dwordx4 %s, v4, s[40:43], s6 offen offset:%d" % (ar(m * 128 + c * 4, 4), (c % 4) * 1024))
    a("s_lshl_b32 s7, s3, 15")
    for c in range(32):
        a("s_add_u32 s8, s7, %d" % (LDS_WV + c * 1024))
        a("s_mov_b32 m0, s8")
        a("s_add_u32 s9, s4, %d" % (2 * 256 * 16384 + c * 1024))
        a("buffer_load_dwordx4 v4, s[40:43], s9 offen lds")
    a("s_lshl_b32 s6, s3, 20")
    a("s_lshl_b32 s7, s2, 12")
    a("s_add_u32 s6, s6, s7")
    a("s_add_u32 s6, s6, %d" % WO_F)
    for i in range(8):
        for sl in range(4):
            a("buffer_load_dwordx4 %s, v4, s[40:43], s6 offen offset:%d" % (vr(128 + (i * 4 + sl) * 4, 4), sl * 1024))
        if i < 7:
            a("s_add_u32 s6, s6, 131072")
    a("v_mov_b32 v16, 0")
    a("v_mov_b32 v17, 0")
    a("v_mov_b32 v18, 0")
    a("v_mov_b32 v19, 0")
    a("s_lshl_b32 s8, s3, 12")
    a("v_add_u32 v5, s8, v4")
    for c in range(4):
        a("ds_write_b128 v5, v[16:19] offset:%d" % (LDS_MF + c * 1024))
    a("v_mul_u32_u24 v9, 48, v1")
    for c in range(6):
        a("ds_write_b128 v9, v[16:19] offset:%d" % (LDS_SC + (c // 3) * 3072 + (c % 3) * 16))
    a("v_lshlrev_b32 v7, 10, v3")
    a("v_lshl_add_u32 v7, v2, 4, v7")
    a("s_lshl_b32 s8, s3, 15")
    a("s_add_u32 s8, s8, %d" % LDS_WV)
    a("v_add_u32 v8, s8, v4")
    a("v_mul_u32_u24 v9, 48, v1")
    a("s_mul_i32 s8, s3, 3072")
    a("v_add_u32 v10, s8, v9")
    a("s_lshl_b32 s8, s3, 10")
    a("v_add_u32 v11, s8, v4")
    a("v_lshlrev_b32 v12, 6, v3")
    a("v_lshl_add_u32 v12, v2, 4, v12")
    a("v_and_b32 v13, 7, v3")
    a("v_lshrrev_b32 v14, 3, v3")
    a("s_lshl_b32 s8, s3, 12")
    a("v_add_u32 v15, s8, v4")
    a("v_lshl_add_u32 v13, v2, 4, v13")
    a("v_lshlrev_b32 v13, 4, v13")
    a("v_lshl_add_u32 v13, v14, 10, v13")
    a("s_lshl_b32 s8, s3, 12")
    a("v_add_u32 v13, s8, v13")
    a("v_lshrrev_b32 v14, 2, v1")
    a("v_lshlrev_b32 v14, 4, v14")
    a("v_and_b32 v0, 1, v1")
    a("v_lshl_add_u32 v14, v0, 10, v14")
    a("v_bfe_u32 v0, v1, 1, 1")
    a("v_lshl_add_u32 v14, v0, 8, v14")
    a("s_lshr_b32 s8, s2, 3")
    a("s_lshl_b32 s32, s8, 12")
    a("s_bfe_u32 s8, s2, 0x10002")
    a("s_lshl_b32 s8, s8, 11")
    a("s_add_u32 s32, s32, s8")
    a("s_bfe_u32 s8, s2, 0x10001")
    a("s_lshl_b32 s8, s8, 7")
    a("s_add_u32 s32, s32, s8")
    a("s_and_b32 s8, s2, 1")
    a("s_lshl_b32 s8, s8, 9")
    a("s_add_u32 s32, s32, s8")
    a("s_add_u32 s32, s32, %d" % MEMN)
    a("s_mov_b32 s20, 0")
    a("s_lshl_b32 s21, s2, 13")
    a("s_mov_b32 s30, 0xffffff00")
    a("s_mov_b32 s31, 0x07060302")
    a("s_waitcnt vmcnt(0) lgkmcnt(0)")
    a("s_barrier")
    if STAMP:
        for i in range(12):
            a("s_mov_b32 s%d, 0" % (64 + i))
        a("s_memtime s[60:61]")
        a("s_waitcnt lgkmcnt(0)")
        a("s_mov_b32 s63, s60")
    tl(a, 1)
    a.label("rec_loop")
    stamp(a, 0)
    a("s_lshl_b32 s8, s20, 18")
    a("s_add_u32 s8, s8, s21")
    a("s_lshl_b32 s9, s3, 11")
    a("s_add_u32 s8, s8, s9")
    for i in range(4):
        a("ds_read_b128 %s, v8 offset:%d" % (vr(48 + 4 * i, 4), i * 1024))
    a("s_cmp_eq_u32 s20, 0")
    a("s_cbranch_scc0 rec_poll_ag")
    wait_counter(a, 20, C_KV, 32, 96, False)
    tl(a, 4)
    a("s_add_u32 s9, s8, %d" % K_F)
    a("buffer_load_dwordx4 v[16:19], v4, s[40:43], s9 offen %s" % RD)
    a("buffer_load_dwordx4 v[20:23], v4, s[40:43], s9 offen offset:1024 %s" % RD)
    a("s_add_u32 s9, s8, %d" % V_F)
    a("buffer_load_dwordx4 v[24:27], v4, s[40:43], s9 offen %s" % RD)
    a("buffer_load_dwordx4 v[28:31], v4, s[40:43], s9 offen offset:1024 %s" % RD)
    for kk in range(16):
        a("buffer_load_dwordx4 %s, v7, s[44:47], 0 offen offset:%d" % (vr(64 + 4 * kk, 4), kk * 64))
    a("s_waitcnt vmcnt(0)")
    a("s_branch rec_mem_done")
    a.label("rec_poll_ag")
    a("s_mov_b32 s10, 0")
    a("s_mov_b32 s9, %d" % MEMN)
    a.label("rec_poll_ag_l")
    a("buffer_load_dwordx4 v[96:99], v15, s[40:43], s9 offen %s" % LDO)
    a("buffer_load_dwordx4 v[100:103], v15, s[40:43], s9 offen offset:1024 %s" % LDO)
    a("buffer_load_dwordx4 v[104:107], v15, s[40:43], s9 offen offset:2048 %s" % LDO)
    a("buffer_load_dwordx4 v[108:111], v15, s[40:43], s9 offen offset:3072 %s" % LDO)
    a("s_add_u32 s10, s10, 1")
    a("s_waitcnt vmcnt(0)")
    for i in range(16):
        a("v_xor_b32 v%d, s20, v%d" % (112 + i, 96 + i))
    for i in range(0, 15, 3):
        pass
    a("v_or3_b32 v112, v112, v113, v114")
    a("v_or3_b32 v115, v115, v116, v117")
    a("v_or3_b32 v118, v118, v119, v120")
    a("v_or3_b32 v121, v121, v122, v123")
    a("v_or3_b32 v124, v124, v125, v126")
    a("v_or3_b32 v112, v112, v115, v118")
    a("v_or3_b32 v121, v121, v124, v127")
    a("v_or_b32 v112, v112, v121")
    a("v_and_b32 v112, 0xffff, v112")
    a("v_cmp_eq_u32 vcc, 0, v112")
    a("s_cmp_gt_u32 s10, 0x200000")
    a("s_cbranch_scc1 rec_end2")
    a("s_cmp_eq_u64 vcc, exec")
    a("s_cbranch_scc0 rec_poll_ag_l")
    stamp(a, 1)
    if STAMP:
        a("s_add_u32 s74, s74, s10")
    for j in range(2):
        for i in range(4):
            a("v_perm_b32 v%d, v%d, v%d, s31" % (112 + j * 4 + i, 96 + j * 8 + 2 * i + 1, 96 + j * 8 + 2 * i))
    a("ds_write_b128 v13, v[112:115] offset:%d" % LDS_MF)
    a("ds_write_b128 v13, v[116:119] offset:%d" % (LDS_MF + 2048))
    a("s_waitcnt lgkmcnt(0)")
    a("s_barrier")
    for kk in range(16):
        a("ds_read_b128 %s, v4 offset:%d" % (vr(64 + 4 * kk, 4), LDS_MF + kk * 1024))
    a.label("rec_mem_done")
    stamp(a, 2)
    for c in range(32):
        et, kk = c // 16, c % 16
        buf = 48 + 4 * (c % 4)
        if c < 16:
            n = min(15, (15 - c) + min(c, 3) if c < 4 else min(3, 15))
            if c >= 4:
                n = min(3, 15 - c + 3)
            a("s_waitcnt lgkmcnt(%d)" % n)
        else:
            a("s_waitcnt lgkmcnt(%d)" % min(3, 31 - c))
        d = vr(32 + et * 4, 4)
        mfma(a, d, vr(64 + 4 * kk, 4), vr(buf, 4), "0" if kk == 0 else d)
        if c + 4 < 32:
            a("ds_read_b128 %s, v8 offset:%d" % (vr(buf, 4), (c + 4) * 1024))
    for kk in range(16):
        for m in range(2):
            for et in range(2):
                d = vr(48 + m * 8 + et * 4, 4)
                mfma(a, d, ar(m * 128 + (et * 16 + kk) * 4, 4), vr(64 + 4 * kk, 4), "0" if kk == 0 else d)
    stamp(a, 3)
    a("v_cvt_pk_bf16_f32 v40, v32, v33")
    a("v_cvt_pk_bf16_f32 v41, v34, v35")
    a("v_mov_b32 v42, 0")
    a("v_mov_b32 v43, 0")
    a("v_cvt_pk_bf16_f32 v44, v36, v37")
    a("v_cvt_pk_bf16_f32 v45, v38, v39")
    a("v_mov_b32 v46, 0")
    a("v_mov_b32 v47, 0")
    a("s_add_u32 s9, s8, %d" % VM_F)
    a("buffer_store_dwordx4 v[40:43], v4, s[40:43], s9 offen %s" % WT)
    a("buffer_store_dwordx4 v[44:47], v4, s[40:43], s9 offen offset:1024 %s" % WT)
    a("v_cvt_pk_bf16_f32 v32, v48, v49")
    a("v_cvt_pk_bf16_f32 v33, v50, v51")
    a("v_cvt_pk_bf16_f32 v34, v52, v53")
    a("v_cvt_pk_bf16_f32 v35, v54, v55")
    a("v_cvt_pk_bf16_f32 v36, v56, v57")
    a("v_cvt_pk_bf16_f32 v37, v58, v59")
    a("v_cvt_pk_bf16_f32 v38, v60, v61")
    a("v_cvt_pk_bf16_f32 v39, v62, v63")
    a("s_lshl_b32 s9, s20, 17")
    a("s_lshl_b32 s11, s2, 12")
    a("s_add_u32 s9, s9, s11")
    a("s_lshl_b32 s11, s3, 10")
    a("s_add_u32 s9, s9, s11")
    a("s_add_u32 s9, s9, %d" % KM_F)
    a("s_waitcnt vmcnt(4)")
    mfma(a, vr(48, 4), vr(16, 4), vr(32, 4), "0")
    mfma(a, vr(52, 4), vr(20, 4), vr(32, 4), "0")
    mfma(a, vr(56, 4), vr(36, 4), vr(32, 4), "0")
    a("buffer_store_dwordx4 v[36:39], v4, s[40:43], s9 offen %s" % WT)
    a.nop(7)
    a("ds_write_b128 v10, v[48:51] offset:%d" % LDS_SC)
    a("ds_write_b128 v10, v[52:55] offset:%d" % (LDS_SC + 16))
    a("ds_write_b128 v10, v[56:59] offset:%d" % (LDS_SC + 32))
    a("s_waitcnt lgkmcnt(0)")
    a("s_barrier")
    stamp(a, 4)
    for w in range(4):
        for q in range(3):
            a("ds_read_b128 %s, v9 offset:%d" % (vr(64 + w * 12 + q * 4, 4), LDS_SC + w * 3072 + q * 16))
    a("s_mov_b32 s16, 0x3db504f3")
    a("s_mov_b32 s17, 0x3db504f3")
    a("s_waitcnt lgkmcnt(6)")
    for i in range(0, 12, 2):
        a("v_pk_add_f32 v[%d:%d], v[%d:%d], v[%d:%d]" % (64 + i, 65 + i, 64 + i, 65 + i, 76 + i, 77 + i))
    a("s_waitcnt lgkmcnt(0)")
    for i in range(0, 12, 2):
        a("v_pk_add_f32 v[%d:%d], v[%d:%d], v[%d:%d]" % (88 + i, 89 + i, 88 + i, 89 + i, 100 + i, 101 + i))
    for i in range(0, 12, 2):
        a("v_pk_add_f32 v[%d:%d], v[%d:%d], v[%d:%d]" % (64 + i, 65 + i, 64 + i, 65 + i, 88 + i, 89 + i))
    for i in range(0, 12, 2):
        a("v_cvt_pk_bf16_f32 v%d, v%d, v%d" % (76 + i // 2, 64 + i, 65 + i))
    for i in range(0, 12, 2):
        a("v_lshlrev_b32 v%d, 16, v%d" % (64 + i, 76 + i // 2))
        a("v_and_b32 v%d, 0xffff0000, v%d" % (65 + i, 76 + i // 2))
    for i in range(0, 12, 2):
        a("v_pk_mul_f32 v[%d:%d], v[%d:%d], s[16:17]" % (64 + i, 65 + i, 64 + i, 65 + i))
    for i in range(0, 12, 2):
        a("v_cvt_pk_bf16_f32 v%d, v%d, v%d" % (76 + i // 2, 64 + i, 65 + i))
    for i in range(0, 12, 2):
        a("v_lshlrev_b32 v%d, 16, v%d" % (64 + i, 76 + i // 2))
        a("v_and_b32 v%d, 0xffff0000, v%d" % (65 + i, 76 + i // 2))
    a("v_mov_b32 v80, 0xce6e6b28")
    a("v_cmp_gt_u32 vcc, 2, v2")
    a("s_nop 1")
    for i in range(8, 12):
        a("v_cndmask_b32 v%d, v80, v%d, vcc" % (64 + i, 64 + i))
    a("v_max3_f32 v80, v64, v65, v66")
    a("v_max3_f32 v81, v67, v68, v69")
    a("v_max3_f32 v82, v70, v71, v72")
    a("v_max3_f32 v83, v73, v74, v75")
    a("v_max3_f32 v80, v80, v81, v82")
    a("v_max_f32 v80, v80, v83")
    for l in xl_reduce(None, "v_max_f32", 80, 83, 84):
        a(l)
    a("v_mul_f32 v81, 0xbfb8aa3b, v80")
    a("s_mov_b32 s16, 0x3fb8aa3b")
    for i in range(12):
        a("v_fma_f32 v%d, v%d, s16, v81" % (64 + i, 64 + i))
    for i in range(12):
        a("v_exp_f32 v%d, v%d" % (64 + i, 64 + i))
    a("s_nop 0")
    a("v_pk_add_f32 v[76:77], v[64:65], v[66:67]")
    a("v_pk_add_f32 v[78:79], v[68:69], v[70:71]")
    a("v_pk_add_f32 v[82:83], v[72:73], v[74:75]")
    a("v_pk_add_f32 v[76:77], v[76:77], v[78:79]")
    a("v_pk_add_f32 v[76:77], v[76:77], v[82:83]")
    a("v_add_f32 v82, v76, v77")
    for l in xl_reduce(None, "v_add_f32", 82, 83, 84):
        a(l)
    a("v_rcp_f32 v80, v82")
    a("s_nop 0")
    a("v_fma_f32 v81, -v82, v80, 2.0")
    a("v_mul_f32 v80, v80, v81")
    a("v_mov_b32 v81, v80")
    for i in range(0, 12, 2):
        a("v_pk_mul_f32 v[%d:%d], v[%d:%d], v[80:81]" % (64 + i, 65 + i, 64 + i, 65 + i))
    for i in range(4):
        a("v_cvt_pk_bf16_f32 v%d, v%d, v%d" % (88 + i, 64 + 2 * i, 65 + 2 * i))
    for i in range(2):
        a("v_cvt_pk_bf16_f32 v%d, v%d, v%d" % (92 + i, 72 + 2 * i, 73 + 2 * i))
    a("v_mov_b32 v94, 0")
    a("v_mov_b32 v95, 0")
    stamp(a, 5)
    a("s_waitcnt vmcnt(3)")
    a("s_nop 0")
    for et in range(2):
        mfma(a, vr(32 + 4 * et, 4), vr(24 + 4 * et, 4), vr(88, 4), "0")
        mfma(a, vr(32 + 4 * et, 4), vr(40 + 4 * et, 4), vr(92, 4), vr(32 + 4 * et, 4))
    a("s_cmp_eq_u32 s20, 63")
    a("s_cbranch_scc1 rec_end")
    a("s_add_u32 s14, s20, 1")
    a("s_and_b32 s15, s14, 3")
    a("s_cmp_eq_u32 s15, 0")
    a("s_cbranch_scc0 rec_kv_ready")
    a("s_lshr_b32 s14, s14, 2")
    wait_counter(a, 14, C_KV, 32, 96, False)
    a.label("rec_kv_ready")
    a("s_add_u32 s9, s8, %d" % (K_F + 262144))
    a("buffer_load_dwordx4 v[16:19], v4, s[40:43], s9 offen %s" % RD)
    a("buffer_load_dwordx4 v[20:23], v4, s[40:43], s9 offen offset:1024 %s" % RD)
    a("s_add_u32 s9, s8, %d" % (V_F + 262144))
    a("s_nop 3")
    a("buffer_load_dwordx4 v[24:27], v4, s[40:43], s9 offen %s" % RD)
    a("buffer_load_dwordx4 v[28:31], v4, s[40:43], s9 offen offset:1024 %s" % RD)
    a("v_cvt_pk_bf16_f32 v32, v32, v33")
    a("v_cvt_pk_bf16_f32 v33, v34, v35")
    a("v_cvt_pk_bf16_f32 v34, v36, v37")
    a("v_cvt_pk_bf16_f32 v35, v38, v39")
    a("ds_write_b128 v11, v[32:35] offset:%d" % LDS_OB)
    a("s_waitcnt lgkmcnt(0)")
    a("s_barrier")
    stamp(a, 6)
    for sl in range(4):
        a("ds_read_b128 %s, v4 offset:%d" % (vr(48 + 4 * sl, 4), LDS_OB + sl * 1024))
    a("s_add_u32 s20, s20, 1")
    a("s_lshl_b32 s9, s3, 17")
    a("s_lshl_b32 s11, s2, 9")
    a("s_add_u32 s9, s9, s11")
    a("s_add_u32 s9, s9, %d" % RS_B)
    a("v_mov_b32 v0, s20")
    a("v_cmp_gt_u32 vcc, 8, v3")
    a("s_mov_b64 s[12:13], vcc")
    def wo_tile(i):
        for sl in range(4):
            if i == 0:
                a("s_waitcnt lgkmcnt(%d)" % (3 - sl))
            d = vr(64 + 4 * i, 4)
            mfma(a, d, vr(128 + (i * 4 + sl) * 4, 4), vr(48 + 4 * sl, 4), "0" if sl == 0 else d)
    def wo_store(i):
        for q in range(4):
            a("v_and_or_b32 v%d, v%d, s30, v0" % (64 + 4 * i + q, 64 + 4 * i + q))
        a("s_mov_b64 exec, s[12:13]")
        a("buffer_store_dwordx4 %s, v12, s[40:43], s9 offen %s" % (vr(64 + 4 * i, 4), SCO))
        a("s_mov_b64 exec, -1")
        a("s_add_u32 s9, s9, 16384")
    wo_tile(0)
    wo_tile(1)
    wo_tile(2)
    for i in range(8):
        wo_store(i)
        if i + 3 < 8:
            wo_tile(i + 3)
        elif i < 7:
            a.nop(8)
    stamp(a, 7)
    a("s_mov_b32 s10, 0")
    a("s_lshl_b32 s9, s2, 14")
    a("s_lshl_b32 s11, s3, 12")
    a("s_add_u32 s9, s9, s11")
    a("s_add_u32 s9, s9, %d" % RS_B)
    a.label("rec_poll_rs")
    for k in range(4):
        a("buffer_load_dwordx4 %s, v4, s[40:43], s9 offen offset:%d %s" % (vr(64 + 4 * k, 4), k * 1024, LDO))
    a("s_add_u32 s10, s10, 1")
    a("v_mov_b32 v48, 0")
    for k in range(4):
        a("s_waitcnt vmcnt(%d)" % (3 - k))
        b = 64 + 4 * k
        a("v_xor_b32 v49, s20, v%d" % b)
        a("v_xor_b32 v50, s20, v%d" % (b + 1))
        a("v_or3_b32 v48, v48, v49, v50")
        a("v_xor_b32 v49, s20, v%d" % (b + 2))
        a("v_xor_b32 v50, s20, v%d" % (b + 3))
        a("v_or3_b32 v48, v48, v49, v50")
        if k:
            a("v_pk_add_f32 v[64:65], v[64:65], v[%d:%d]" % (b, b + 1))
            a("v_pk_add_f32 v[66:67], v[66:67], v[%d:%d]" % (b + 2, b + 3))
    a("v_and_b32 v48, 0xff, v48")
    a("v_cmp_eq_u32 vcc, 0, v48")
    a("s_cmp_gt_u32 s10, 0x200000")
    a("s_cbranch_scc1 rec_end2")
    a("s_cmp_eq_u64 vcc, exec")
    a("s_cbranch_scc0 rec_poll_rs")
    a("ds_write_b128 v11, v[64:67] offset:%d" % LDS_SC)
    a("s_waitcnt lgkmcnt(0)")
    a("s_barrier")
    a("s_cmp_eq_u32 s3, 0")
    a("s_cbranch_scc0 rec_wait0")
    for w in range(4):
        a("ds_read_b128 %s, v4 offset:%d" % (vr(64 + 4 * w, 4), LDS_SC + w * 1024))
    a("s_waitcnt lgkmcnt(0)")
    a("v_pk_add_f32 v[64:65], v[64:65], v[68:69]")
    a("v_pk_add_f32 v[66:67], v[66:67], v[70:71]")
    a("v_pk_add_f32 v[72:73], v[72:73], v[76:77]")
    a("v_pk_add_f32 v[74:75], v[74:75], v[78:79]")
    a("v_pk_add_f32 v[64:65], v[64:65], v[72:73]")
    a("v_pk_add_f32 v[66:67], v[66:67], v[74:75]")
    stamp(a, 8)
    if STAMP:
        a("s_add_u32 s75, s75, s10")
    for i in range(4):
        a("v_mov_b32 v%d, v%d" % (68 + i, 64 + i))
    a("s_nop 1")
    for i in range(4):
        a("v_permlane32_swap_b32 v%d, v%d" % (64 + i, 68 + i))
    a("s_nop 1")
    for i in range(4):
        a("v_add_f32 v%d, v%d, v%d" % (64 + i, 64 + i, 68 + i))
    for i in range(4):
        a("v_cvt_pk_bf16_f32 v%d, v%d, v%d" % (64 + i, 64 + i, 64 + i))
        a("v_lshl_or_b32 v%d, v%d, 16, v0" % (64 + i, 64 + i))
    a("s_mov_b32 exec_hi, 0")
    a("buffer_store_dwordx4 v[64:67], v14, s[40:43], s32 offen %s" % SCO)
    a("s_mov_b64 exec, -1")
    stamp(a, 9)
    a.label("rec_wait0")
    a("s_and_b32 s15, s20, 3")
    a("s_cmp_eq_u32 s15, 0")
    a("s_cbranch_scc1 rec_sig")
    a("s_barrier")
    a("s_branch rec_loop")
    a.label("rec_sig")
    a("s_lshr_b32 s14, s20, 2")
    a("s_sub_u32 s14, s14, 1")
    signal_counter(a, 14, C_REC, 96)
    a("s_branch rec_loop")
    a.label("rec_end")
    tl(a, 2)
    a("s_mov_b32 s14, 15")
    signal_counter(a, 14, C_REC, 96)
    if STAMP:
        a("s_or_b32 s8, s2, s3")
        a("s_cmp_eq_u32 s8, 0")
        a("s_cbranch_scc0 rec_end2")
        a("v_mov_b32 v16, 0")
        a("s_mov_b64 exec, 1")
        for i in range(12):
            a("v_mov_b32 v17, s%d" % (64 + i))
            a("buffer_store_dword v17, v16, s[48:51], 0 offen offset:%d" % (128 + 4 * i))
    a("s_mov_b64 exec, -1")
    a("s_branch worker_start")
    a.label("rec_end2")
    a("s_endpgm")
    return kd("rec_kernel", 512, 256)


def wait_counter(a, sidx, cbase, target, t=16, solo=True):
    l = a.newlabel("wc")
    if solo:
        a("s_cmp_eq_u32 s3, 0")
        a("s_cbranch_scc0 %s_ok" % l)
    a("s_add_u32 s80, s%d, %d" % (sidx, cbase))
    a("s_lshl_b32 s80, s80, 6")
    a("s_add_u32 s80, s80, %d" % CNT)
    a("v_mov_b32 v%d, 0" % (t + 1))
    a("s_mov_b32 s82, 0")
    a.label(l)
    a("buffer_load_dword v%d, v%d, s[40:43], s80 offen %s" % (t, t + 1, RD))
    a("s_add_u32 s82, s82, 1")
    a("s_waitcnt vmcnt(0)")
    a("v_readfirstlane_b32 s81, v%d" % t)
    a("s_cmp_ge_u32 s81, %d" % target)
    a("s_cbranch_scc1 %s_ok" % l)
    a("s_cmp_gt_u32 s82, 0x400000")
    a("s_cbranch_scc1 rec_end2")
    a("s_sleep %d" % (6 if solo else 2))
    a("s_branch %s" % l)
    a.label(l + "_ok")
    if solo:
        a("s_barrier")


def signal_counter(a, sidx, cbase, t=16):
    l = a.newlabel("sg")
    a("s_waitcnt vmcnt(0)")
    a("s_barrier")
    a("s_cmp_eq_u32 s3, 0")
    a("s_cbranch_scc0 %s" % l)
    a("s_add_u32 s80, s%d, %d" % (sidx, cbase))
    a("s_lshl_b32 s80, s80, 6")
    a("s_add_u32 s80, s80, %d" % CNT)
    a("v_mov_b32 v%d, 1" % t)
    a("v_mov_b32 v%d, 0" % (t + 1))
    a("s_mov_b64 exec, 1")
    a("buffer_atomic_add v%d, v%d, s[40:43], s80 offen" % (t, t + 1))
    a("s_mov_b64 exec, -1")
    a.label(l)


def body_qkv(a):
    a("s_cmp_eq_u32 s90, s4")
    a("s_cbranch_scc1 qkv_have_panel")
    a("s_mov_b32 s90, s4")
    a("s_barrier")
    a("s_lshl_b32 s6, s4, 17")
    a("s_lshl_b32 s7, s3, 15")
    a("s_add_u32 s6, s6, s7")
    if XN_F:
        a("s_add_u32 s6, s6, %d" % XN_F)
    for c in range(32):
        a("s_add_u32 s8, s7, %d" % (c * 1024))
        a("s_mov_b32 m0, s8")
        a("s_add_u32 s9, s6, %d" % (c * 1024))
        a("buffer_load_dwordx4 v4, s[40:43], s9 offen lds")
    a("s_waitcnt vmcnt(0)")
    a("s_barrier")
    a.label("qkv_have_panel")
    a("s_lshl_b32 s12, s11, 4")
    a("s_lshl_b32 s13, s3, 2")
    a("s_add_u32 s12, s12, s13")
    a("s_lshl_b32 s14, s12, 14")
    a("s_add_u32 s14, s14, %d" % WQKV_F)
    for j in range(4):
        a("v_add_u32 v%d, %d, v4" % (8 + j, j * 16384))
    a("s_lshr_b32 s15, s12, 3")
    a("s_and_b32 s15, s15, 31")
    a("s_and_b32 s16, s12, 7")
    a("s_cmp_ge_u32 s11, 32")
    a("s_cbranch_scc1 qkv_v")
    gemm_panel_core(a, False, 4, 5, 8, 14, 40)
    a("s_cmp_ge_u32 s11, 16")
    a("s_cselect_b32 s17, %d, 0" % (K_F - Q_F))
    a("s_add_u32 s17, s17, %d" % Q_F)
    a("s_lshl_b32 s18, s4, 20")
    a("s_add_u32 s17, s17, s18")
    a("s_lshl_b32 s18, s15, 13")
    a("s_add_u32 s17, s17, s18")
    a("s_lshl_b32 s18, s16, 10")
    a("s_add_u32 s17, s17, s18")
    for tt in range(8):
        for p in range(2):
            d = 16 + 16 * (p & 1)
            read_acc_pack(a, d, (tt * 4 + 2 * p) * 4, (tt * 4 + 2 * p + 1) * 4)
            off = (tt // 2) * 262144 + p * 2048 + (tt % 2) * 1024
            a("s_add_u32 s18, s17, %d" % off)
            a("buffer_store_dwordx4 %s, v4, s[40:43], s18 offen %s" % (vr(d, 4), WT))
    a("s_branch qkv_sig")
    a.label("qkv_v")
    gemm_panel_core(a, True, 4, 5, 8, 14, 40)
    a("s_lshl_b32 s17, s4, 20")
    a("s_add_u32 s17, s17, %d" % V_F)
    a("s_lshl_b32 s18, s15, 13")
    a("s_add_u32 s17, s17, s18")
    a("s_lshl_b32 s18, s16, 10")
    a("s_add_u32 s17, s17, s18")
    for sg in range(4):
        for j in range(4):
            d = 16 + 16 * (j & 1)
            read_acc_pack(a, d, ((2 * sg) * 4 + j) * 4, ((2 * sg + 1) * 4 + j) * 4)
            off = sg * 262144 + j * 1024
            a("s_add_u32 s18, s17, %d" % off)
            a("buffer_store_dwordx4 %s, v4, s[40:43], s18 offen %s" % (vr(d, 4), WT))
    a.label("qkv_sig")
    a("s_cmp_ge_u32 s11, 16")
    a("s_cselect_b32 s19, %d, %d" % (C_KV, C_QD))
    a("s_add_u32 s19, s19, s4")
    signal_counter(a, 19, 0)


def body_attn(a):
    wait_counter(a, 4, C_QD, 16)
    wait_counter(a, 4, C_KV, 32)
    a("s_lshl_b32 s6, s4, 7")
    a("s_lshl_b32 s7, s5, 2")
    a("s_add_u32 s6, s6, s7")
    a("s_add_u32 s10, s6, s3")
    a("s_lshl_b32 s11, s10, 13")
    a("s_lshl_b32 s12, s10, 12")
    def ld(dst, base, n):
        for c in range(n):
            if c % 4 == 0:
                a("s_add_u32 s7, s%d, %d" % (base[0], base[1] + c * 1024))
            a("buffer_load_dwordx4 %s, v4, s[40:43], s7 offen offset:%d %s" % (vr(dst + 4 * c, 4), (c % 4) * 1024, RD))
    ld(32, (11, Q_F), 8)
    ld(64, (11, K_F), 8)
    ld(112, (11, V_F), 8)
    wait_counter(a, 4, C_REC, 32)
    ld(96, (12, KM_F), 4)
    ld(144, (11, VM_F), 8)
    a("s_waitcnt vmcnt(8)")
    for tq in range(2):
        for sl in range(4):
            q = vr(32 + (sl * 2 + tq) * 4, 4)
            for jt in range(2):
                d = vr(176 + tq * 12 + jt * 4, 4)
                mfma(a, d, vr(64 + (sl * 2 + jt) * 4, 4), q, "0" if sl == 0 else d)
            d = vr(176 + tq * 12 + 8, 4)
            mfma(a, d, vr(96 + sl * 4, 4), q, "0" if sl == 0 else d)
    a.nop(8)
    a("v_mov_b32 v8, 0xce6e6b28")
    a("v_lshlrev_b32 v9, 2, v2")
    a("v_add_u32 v11, 64, v3")
    for tq in range(2):
        S = 176 + tq * 12
        for i in range(12):
            scale_round(a, S + i, 0)
        for idx in range(8):
            koff = 16 * (idx // 4) + idx % 4 - 16 * tq
            if koff <= -16:
                continue
            a("v_add_u32 v10, %d, v9" % (koff + 64))
            a("v_cmp_le_u32 vcc, v10, v11")
            a("s_nop 1")
            a("v_cndmask_b32 v%d, v8, v%d, vcc" % (S + idx, S + idx))
        a("v_cmp_gt_u32 vcc, 2, v2")
        a("s_nop 1")
        for i in range(8, 12):
            a("v_cndmask_b32 v%d, v8, v%d, vcc" % (S + i, S + i))
        for l in softmax12_list(S, 12, 13, 14, 15, 16, 200 + tq * 8, 204 + tq * 8):
            a(l)
        a("v_mov_b32 v%d, 0" % (206 + tq * 8))
        a("v_mov_b32 v%d, 0" % (207 + tq * 8))
    a("s_waitcnt vmcnt(0)")
    a.nop(2)
    for et in range(8):
        for tq in range(2):
            d = vr(32 + (et * 2 + tq) * 4, 4)
            mfma(a, d, vr(112 + et * 4, 4), vr(200 + tq * 8, 4), "0")
            mfma(a, d, vr(144 + et * 4, 4), vr(204 + tq * 8, 4), d)
    a.nop(8)
    a("s_lshr_b32 s7, s10, 5")
    a("s_and_b32 s8, s10, 31")
    a("s_lshl_b32 s7, s7, 18")
    a("s_lshl_b32 s8, s8, 12")
    a("s_add_u32 s7, s7, s8")
    a("s_add_u32 s7, s7, %d" % O_F)
    a("s_add_u32 s8, s7, 131072")
    for p in range(4):
        for tq in range(2):
            b0 = 32 + ((2 * p) * 2 + tq) * 4
            b1 = 32 + ((2 * p + 1) * 2 + tq) * 4
            d = 216 + ((p * 2 + tq) % 4) * 4
            a("v_cvt_pk_bf16_f32 v%d, v%d, v%d" % (d, b0, b0 + 1))
            a("v_cvt_pk_bf16_f32 v%d, v%d, v%d" % (d + 1, b0 + 2, b0 + 3))
            a("v_cvt_pk_bf16_f32 v%d, v%d, v%d" % (d + 2, b1, b1 + 1))
            a("v_cvt_pk_bf16_f32 v%d, v%d, v%d" % (d + 3, b1 + 2, b1 + 3))
            a("buffer_store_dwordx4 %s, v4, s[40:43], s%d offen offset:%d %s" % (vr(d, 4), 7 + tq, p * 1024, WT))
    signal_counter(a, 4, C_AT)


def body_splitk(a, name, nks, A_F, B_F, res_is_x):
    per = nks // 4
    a("s_mov_b32 s90, -1")
    a("s_lshr_b32 s10, s5, 4")
    a("s_lshl_b32 s11, s4, 3")
    a("s_add_u32 s10, s10, s11")
    a("s_and_b32 s11, s5, 15")
    a("s_mul_i32 s6, s10, %d" % (nks * 1024))
    a("s_mul_i32 s7, s3, %d" % (per * 1024))
    a("s_add_u32 s6, s6, s7")
    a("s_add_u32 s6, s6, %d" % A_F)
    a("s_mul_i32 s8, s11, %d" % (2 * nks * 1024))
    a("s_add_u32 s8, s8, s7")
    a("s_add_u32 s8, s8, %d" % B_F)
    a("v_add_u32 v8, %d, v4" % (nks * 1024))
    for ks in range(per):
        a("buffer_load_dwordx4 %s, v4, s[40:43], s8 offen offset:%d" % (ar(ks * 8, 4), (ks % 4) * 1024))
        a("buffer_load_dwordx4 %s, v8, s[40:43], s8 offen offset:%d" % (ar(ks * 8 + 4, 4), (ks % 4) * 1024))
        if ks % 4 == 3:
            a("s_add_u32 s8, s8, 4096")
    if res_is_x:
        wait_counter(a, 4, C_AT, 32)
    else:
        wait_counter(a, 4, C_F1, 56)
    for ks in range(per):
        a("buffer_load_dwordx4 %s, v4, s[40:43], s6 offen offset:%d %s" % (vr(32 + ks * 4, 4), (ks % 4) * 1024, RD))
        if ks % 4 == 3:
            a("s_add_u32 s6, s6, 4096")
    a("v_lshlrev_b32 v6, 10, v3")
    a("v_lshl_add_u32 v6, v2, 3, v6")
    a("s_lshl_b32 s9, s10, 14")
    a("s_lshl_b32 s12, s11, 6")
    a("s_add_u32 s9, s9, s12")
    rsrd = 44 if res_is_x else 40
    if not res_is_x:
        a("s_add_u32 s13, s9, %d" % H_B)
    else:
        a("s_mov_b32 s13, s9")
    for j in range(2):
        a("buffer_load_dwordx2 %s, v6, s[%d:%d], s13 offen offset:%d %s" % (vr(192 + j * 2, 2), rsrd, rsrd + 3, j * 32, "" if res_is_x else RD))
    for ks in range(per):
        a("s_waitcnt vmcnt(%d)" % (per - 1 - ks + 2))
        for j in range(2):
            d = vr(160 + j * 4, 4)
            mfma(a, d, ar(ks * 8 + 4 * j, 4), vr(32 + ks * 4, 4), "0" if ks == 0 else d)
    a.nop(8)
    a("s_cmp_eq_u32 s3, 0")
    a("s_cbranch_scc1 %s_w0" % name)
    a("s_sub_u32 s9, s3, 1")
    a("s_lshl_b32 s9, s9, 11")
    a("v_add_u32 v5, s9, v4")
    for t in range(2):
        a("ds_write_b128 v5, %s offset:%d" % (vr(160 + 4 * t, 4), t * 1024))
    a("s_waitcnt lgkmcnt(0)")
    a("s_barrier")
    a("s_branch %s_fin" % name)
    a.label("%s_w0" % name)
    a("s_barrier")
    for t in range(2):
        for w in range(3):
            a("ds_read_b128 %s, v4 offset:%d" % (vr(32 + (t * 3 + w) * 4, 4), w * 2048 + t * 1024))
    a("s_waitcnt vmcnt(0) lgkmcnt(0)")
    for t in range(2):
        for i in range(4):
            b = 32 + t * 12
            a("v_add_f32 v%d, v%d, v%d" % (b + i, b + i, b + 4 + i))
            a("v_add_f32 v%d, v%d, v%d" % (160 + 4 * t + i, 160 + 4 * t + i, b + 8 + i))
            a("v_add_f32 v%d, v%d, v%d" % (160 + 4 * t + i, 160 + 4 * t + i, b + i))
    if res_is_x:
        a("s_add_u32 s13, s9, %d" % H_B)
        osrd = 40
    else:
        a("s_mov_b32 s13, s9")
        osrd = 52
    for j in range(2):
        acc = 160 + 4 * j
        rr = 192 + 2 * j
        for q in range(4):
            round_bf16(a, acc + q, acc + q)
        a("v_lshlrev_b32 v32, 16, v%d" % rr)
        a("v_and_b32 v33, 0xffff0000, v%d" % rr)
        a("v_lshlrev_b32 v34, 16, v%d" % (rr + 1))
        a("v_and_b32 v35, 0xffff0000, v%d" % (rr + 1))
        for q in range(4):
            a("v_add_f32 v%d, v%d, v%d" % (acc + q, acc + q, 32 + q))
        a("v_cvt_pk_bf16_f32 v%d, v%d, v%d" % (rr, acc, acc + 1))
        a("v_cvt_pk_bf16_f32 v%d, v%d, v%d" % (rr + 1, acc + 2, acc + 3))
        a("buffer_store_dwordx2 %s, v6, s[%d:%d], s13 offen offset:%d %s" % (vr(rr, 2), osrd, osrd + 3, j * 32, WT if res_is_x else ""))
    a.label("%s_fin" % name)
    a("v_add_u32 v5, 0x10000, v4")
    if res_is_x:
        signal_counter(a, 4, C_WO)


def body_ffn1(a):
    a("s_mul_hi_u32 s10, s5, %d" % ((1 << 32) // 14 + 1))
    a("s_mul_i32 s11, s10, 14")
    a("s_sub_u32 s11, s5, s11")
    a("s_lshl_b32 s12, s11, 3")
    a("s_lshl_b32 s13, s3, 1")
    a("s_add_u32 s12, s12, s13")
    a("s_lshl_b32 s14, s12, 14")
    a("s_add_u32 s14, s14, %d" % WGU_F)
    a("v_add_u32 v9, 16384, v4")
    a("v_add_u32 v10, %d, v4" % (112 * 16384))
    a("v_add_u32 v11, %d, v4" % (113 * 16384))
    for kk in range(16):
        if kk % 4 == 0 and kk:
            a("s_add_u32 s14, s14, 4096")
        for j, vb in enumerate([4, 9, 10, 11]):
            a("buffer_load_dwordx4 %s, v%d, s[40:43], s14 offen offset:%d" % (ar((kk * 4 + j) * 4, 4), vb, (kk % 4) * 1024))
    wait_counter(a, 4, C_WO, 128)
    a("s_mov_b32 s90, -1")
    a("s_barrier")
    a("s_cmp_ge_u32 s3, 2")
    a("s_cbranch_scc1 ffn1_noln")
    a("v_xor_b32 v6, 16, v1")
    a("v_lshlrev_b32 v6, 2, v6")
    a("v_xor_b32 v7, 32, v1")
    a("v_lshlrev_b32 v7, 2, v7")
    a("v_lshlrev_b32 v8, 10, v3")
    a("v_lshl_add_u32 v8, v2, 4, v8")
    a("s_lshl_b32 s6, s4, 17")
    a("s_lshl_b32 s7, s10, 15")
    a("s_add_u32 s6, s6, s7")
    a("s_lshl_b32 s7, s3, 14")
    a("s_add_u32 s6, s6, s7")
    a("s_add_u32 s6, s6, %d" % H_B)
    for kk in range(16):
        a("buffer_load_dwordx4 %s, v8, s[40:43], s6 offen offset:%d %s" % (vr(32 + 4 * kk, 4), kk * 64, RD))
    a("s_waitcnt vmcnt(0)")
    layernorm_rows(a, 32, 16, 96, 16, 6, 7)
    a("v_add_u32 v9, s7, v4")
    for kk in range(16):
        a("ds_write_b128 v9, %s offset:%d" % (vr(32 + 4 * kk, 4), kk * 1024))
    a.label("ffn1_noln")
    a("s_waitcnt vmcnt(0) lgkmcnt(0)")
    a("s_barrier")
    for kk in range(16):
        for tt in range(2):
            a("ds_read_b128 %s, v4 offset:%d" % (vr(32 + (kk * 2 + tt) * 4, 4) if kk < 8 else vr(128 + ((kk - 8) * 2 + tt) * 4, 4), tt * 16384 + kk * 1024))
    for kk in range(16):
        a("s_waitcnt lgkmcnt(%d)" % min(15, 2 * (15 - kk)))
        for tt in range(2):
            x = vr(32 + (kk * 2 + tt) * 4, 4) if kk < 8 else vr(128 + ((kk - 8) * 2 + tt) * 4, 4)
            for j in range(4):
                d = vr(96 + (tt * 4 + j) * 4, 4)
                mfma(a, d, ar((kk * 4 + j) * 4, 4), x, "0" if kk == 0 else d)
    a.nop(8)
    a("s_lshl_b32 s17, s4, 3")
    a("s_lshl_b32 s18, s10, 1")
    a("s_add_u32 s17, s17, s18")
    a("s_mul_i32 s17, s17, %d" % (56 * 1024))
    a("s_lshl_b32 s18, s12, 9")
    a("s_add_u32 s17, s17, s18")
    a("s_add_u32 s17, s17, %d" % ACT_F)
    for tt in range(2):
        b = 96 + tt * 16
        for i in range(16):
            round_bf16(a, b + i, b + i)
        for i in range(8):
            a("v_mul_f32 v%d, v%d, v%d" % (b + i, b + i, b + 8 + i))
        d = 32 + tt * 4
        for i in range(4):
            a("v_cvt_pk_bf16_f32 v%d, v%d, v%d" % (d + i, b + 2 * i, b + 1 + 2 * i))
        a("buffer_store_dwordx4 %s, v4, s[40:43], s17 offen %s" % (vr(d, 4), WT))
        a("s_add_u32 s17, s17, %d" % (56 * 1024))
    signal_counter(a, 4, C_F1)


N_T1 = 768
PER_TB = 344
N_TASK = N_T1 + 19 * PER_TB
LDS_BCAST = 163840 - 64


def gen_worker(a):
    a.label("worker_start")
    a("s_load_dwordx2 s[24:25], s[0:1], %d" % KA_X)
    a("s_load_dwordx2 s[26:27], s[0:1], %d" % KA_OUT)
    a("s_waitcnt lgkmcnt(0)")
    srd(a, 44, 24, 2048 * 512 * 2)
    srd(a, 52, 26, 2048 * 512 * 2)
    a("s_mov_b32 s90, -1")
    a("v_add_u32 v5, 0x10000, v4")
    a.label("worker_loop")
    a("v_mov_b32 v18, %d" % LDS_BCAST)
    a("s_cmp_eq_u32 s3, 0")
    a("s_cbranch_scc0 worker_t1")
    a("v_mov_b32 v16, 1")
    a("v_mov_b32 v17, 0")
    a("s_mov_b32 s80, %d" % (CNT + 64 * C_QUEUE))
    a("s_mov_b64 exec, 1")
    a("buffer_atomic_add v16, v17, s[40:43], s80 offen sc0")
    a("s_waitcnt vmcnt(0)")
    a("ds_write_b32 v18, v16")
    a("s_waitcnt lgkmcnt(0)")
    a("s_mov_b64 exec, -1")
    a.label("worker_t1")
    a("s_barrier")
    a("ds_read_b32 v16, v18")
    a("s_waitcnt lgkmcnt(0)")
    a("v_readfirstlane_b32 s91, v16")
    a("s_barrier")
    a("s_cmp_ge_u32 s91, %d" % N_TASK)
    a("s_cbranch_scc1 worker_fin")
    a("s_cmp_ge_u32 s91, %d" % N_T1)
    a("s_cbranch_scc1 worker_stage")
    a("s_mul_hi_u32 s4, s91, %d" % ((1 << 32) // 48 + 1))
    a("s_mul_i32 s5, s4, 48")
    a("s_sub_u32 s5, s91, s5")
    a("s_add_u32 s11, s5, 16")
    a("s_cmp_ge_u32 s11, 48")
    a("s_cselect_b32 s5, 48, 0")
    a("s_sub_u32 s11, s11, s5")
    body_qkv(a)
    a("s_branch worker_loop")
    a.label("worker_stage")
    a("s_sub_u32 s5, s91, %d" % N_T1)
    a("s_mul_hi_u32 s4, s5, %d" % ((1 << 32) // PER_TB + 1))
    a("s_mul_i32 s6, s4, %d" % PER_TB)
    a("s_sub_u32 s5, s5, s6")
    a("s_cmp_ge_u32 s5, 128")
    a("s_cbranch_scc1 worker_s4")
    a("s_sub_u32 s4, s4, 1")
    a("s_cmp_ge_u32 s4, 16")
    a("s_cbranch_scc1 worker_loop")
    body_splitk(a, "wo", 128, O_F, WO_F, True)
    tl15(a, 6)
    a("s_branch worker_loop")
    a.label("worker_s4")
    a("s_sub_u32 s5, s5, 128")
    a("s_cmp_ge_u32 s5, 56")
    a("s_cbranch_scc1 worker_s5")
    a("s_sub_u32 s4, s4, 2")
    a("s_cmp_ge_u32 s4, 16")
    a("s_cbranch_scc1 worker_loop")
    body_ffn1(a)
    tl15(a, 7)
    a("s_branch worker_loop")
    a.label("worker_s5")
    a("s_sub_u32 s5, s5, 56")
    a("s_cmp_ge_u32 s5, 128")
    a("s_cbranch_scc1 worker_s2")
    a("s_sub_u32 s4, s4, 3")
    a("s_cmp_ge_u32 s4, 16")
    a("s_cbranch_scc1 worker_loop")
    body_splitk(a, "f2", 56, ACT_F, WD_F, False)
    tl15(a, 8)
    a("s_branch worker_loop")
    a.label("worker_s2")
    a("s_sub_u32 s5, s5, 128")
    a("s_cmp_ge_u32 s4, 16")
    a("s_cbranch_scc1 worker_loop")
    body_attn(a)
    tl15(a, 5)
    a("s_branch worker_loop")
    a.label("worker_fin")
    tl(a, 3)
    a("s_endpgm")


def main():
    a = A()
    hdr = []
    ref = open("cdna_kernels/%s.s.ref" % NAME).read().split("\n")
    for l in ref:
        if l.startswith("; @launch") or l.startswith("; Override") or l.startswith("; grid="):
            continue
        if l.startswith(";"):
            hdr.append(l)
        else:
            break
    launches = [
        ("prep_kernel", (N_PREP + 3) // 4, PREP_LDS),
        ("rec_kernel", 256, REC_LDS),
    ]
    for n, g, lds in launches:
        hdr.append("; @launch kernel=%s grid=(%d,1,1) block=(256,1,1) lds=%d" % (n, g, lds))
    kds = []
    kds.append(gen_prep(a))
    kds.append(gen_rec(a))
    gen_worker(a)
    out = "\n".join(hdr) + "\n"
    out += '.amdgcn_target "amdgcn-amd-amdhsa--gfx950"\n.text\n'
    out += a.text()
    out += '.section .rodata,"a"\n'
    for k in kds:
        out += ".p2align 6\n" + k
    path = sys.argv[1] if len(sys.argv) > 1 else "cdna_kernels/%s.s" % NAME
    open(path, "w").write(out)
    print("wrote", path, len(out), "bytes")


main()
```

```python
import sys
import os

NAME = "sequential_preLN__memory_aug_recurrent_mem_tr__glu_gated_bilinear__prompt"
MB = 1 << 20
XN_F = 0
WQKV_F = 2 * MB
WO_F = 14 * MB
WGU_F = 18 * MB
WD_F = 22 * MB
Q_F = 24 * MB
K_F = 40 * MB
V_F = 56 * MB
KM_F = 72 * MB
VM_F = 80 * MB
O_F = 96 * MB
H_B = 112 * MB
ACT_F = 114 * MB
RS_B = 124 * MB
MEMN = 125 * MB
CNT = 126 * MB
C_QUEUE, C_KV, C_QD, C_REC, C_AT, C_WO, C_F1 = 0, 1, 17, 33, 49, 65, 81
WS_BYTES = 256 * MB
WT = "sc0 sc1"
RD = "sc1"

KA_X, KA_MEM0, KA_WQ, KA_WK, KA_WV, KA_WO, KA_SEG, KA_BX, KA_WG, KA_WU, KA_WD, KA_OUT, KA_DBG, KA_WS = [8 * i for i in range(14)]


class A:
    def __init__(self):
        self.lines = []
        self.uid = 0

    def __call__(self, s):
        for l in s.strip("\n").split("\n"):
            self.lines.append("    " + l.strip())

    def label(self, name):
        self.lines.append(name + ":")

    def newlabel(self, p="L"):
        self.uid += 1
        return "%s_%d" % (p, self.uid)

    def nop(self, n):
        while n > 0:
            k = min(n, 16)
            self("s_nop %d" % (k - 1))
            n -= k

    def text(self):
        return "\n".join(self.lines) + "\n"


def srd(a, s, ptr_lo, nbytes):
    a("s_mov_b32 s%d, s%d" % (s, ptr_lo))
    a("s_and_b32 s%d, s%d, 0xffff" % (s + 1, ptr_lo + 1))
    a("s_mov_b32 s%d, %d" % (s + 2, nbytes))
    a("s_mov_b32 s%d, 0x00020000" % (s + 3))


def vr(b, n=1):
    return "v%d" % b if n == 1 else "v[%d:%d]" % (b, b + n - 1)


def ar(b, n=1):
    return "a%d" % b if n == 1 else "a[%d:%d]" % (b, b + n - 1)


def mfma(a, d, x, y, c):
    a("v_mfma_f32_16x16x32_bf16 %s, %s, %s, %s" % (d, x, y, c))


def kernel_begin(a, name):
    a.lines.append(".globl %s" % name)
    a.lines.append(".p2align 8")
    a.lines.append(".type %s,@function" % name)
    a.label(name)


def kd(name, vgpr, accum, sgpr=102):
    return """.amdhsa_kernel %s
  .amdhsa_next_free_vgpr %d
  .amdhsa_next_free_sgpr %d
  .amdhsa_accum_offset %d
  .amdhsa_group_segment_fixed_size 0
  .amdhsa_kernarg_size 112
  .amdhsa_user_sgpr_count 2
  .amdhsa_user_sgpr_kernarg_segment_ptr 1
  .amdhsa_system_sgpr_workgroup_id_x 1
.end_amdhsa_kernel
""" % (name, vgpr, sgpr, accum)


def lane_setup(a, vlane=1, vg=2, vr_=3, swave=3):
    a("v_lshrrev_b32 v%d, 6, v0" % vlane)
    a("s_nop 0")
    a("v_readfirstlane_b32 s%d, v%d" % (swave, vlane))
    a("v_and_b32 v%d, 63, v0" % vlane)
    a("v_lshrrev_b32 v%d, 4, v%d" % (vg, vlane))
    a("v_and_b32 v%d, 15, v%d" % (vr_, vlane))


def round_bf16(a, dst, src):
    a("v_cvt_pk_bf16_f32 v%d, v%d, v%d" % (dst, src, src))
    a("v_lshlrev_b32 v%d, 16, v%d" % (dst, dst))


def xlane_sum4(a, v, tmp, vaddr16, vaddr32):
    a("ds_bpermute_b32 v%d, v%d, v%d" % (tmp, vaddr16, v))
    a("s_waitcnt lgkmcnt(0)")
    a("v_add_f32 v%d, v%d, v%d" % (v, v, tmp))
    a("ds_bpermute_b32 v%d, v%d, v%d" % (tmp, vaddr32, v))
    a("s_waitcnt lgkmcnt(0)")
    a("v_add_f32 v%d, v%d, v%d" % (v, v, tmp))


def xlane_max4(a, v, tmp, vaddr16, vaddr32):
    a("ds_bpermute_b32 v%d, v%d, v%d" % (tmp, vaddr16, v))
    a("s_waitcnt lgkmcnt(0)")
    a("v_max_f32 v%d, v%d, v%d" % (v, v, tmp))
    a("ds_bpermute_b32 v%d, v%d, v%d" % (tmp, vaddr32, v))
    a("s_waitcnt lgkmcnt(0)")
    a("v_max_f32 v%d, v%d, v%d" % (v, v, tmp))


def layernorm_rows(a, raw, nk, f32, tmp, vaddr16, vaddr32):
    n = nk * 8
    t0, t1, t2, t3, t4, t5 = [tmp + i for i in range(6)]
    for i in range(nk * 4):
        a("v_lshlrev_b32 v%d, 16, v%d" % (f32 + 2 * i, raw + i))
        a("v_and_b32 v%d, 0xffff0000, v%d" % (f32 + 2 * i + 1, raw + i))
    a("v_add_f32 v%d, v%d, v%d" % (t0, f32, f32 + 1))
    for i in range(2, n):
        a("v_add_f32 v%d, v%d, v%d" % (t0, t0, f32 + i))
    xlane_sum4(a, t0, t1, vaddr16, vaddr32)
    a("v_mul_f32 v%d, 0x3b000000, v%d" % (t0, t0))
    a("v_mov_b32 v%d, 0" % t2)
    for i in range(n):
        a("v_sub_f32 v%d, v%d, v%d" % (t1, f32 + i, t0))
        a("v_fmac_f32 v%d, v%d, v%d" % (t2, t1, t1))
    xlane_sum4(a, t2, t1, vaddr16, vaddr32)
    a("v_mul_f32 v%d, 0x3b000000, v%d" % (t2, t2))
    round_bf16(a, t0, t0)
    round_bf16(a, t2, t2)
    a("v_add_f32 v%d, 0x3727c5ac, v%d" % (t2, t2))
    round_bf16(a, t2, t2)
    a("v_sqrt_f32 v%d, v%d" % (t2, t2))
    a("s_nop 0")
    round_bf16(a, t2, t2)
    a("v_rcp_f32 v%d, v%d" % (t3, t2))
    a("s_nop 0")
    a("v_fma_f32 v%d, -v%d, v%d, 2.0" % (t4, t2, t3))
    a("v_mul_f32 v%d, v%d, v%d" % (t3, t3, t4))
    for i in range(nk * 4):
        lo, hi = f32 + 2 * i, f32 + 2 * i + 1
        a("v_sub_f32 v%d, v%d, v%d" % (lo, lo, t0))
        a("v_sub_f32 v%d, v%d, v%d" % (hi, hi, t0))
        a("v_cvt_pk_bf16_f32 v%d, v%d, v%d" % (t4, lo, hi))
        a("v_lshlrev_b32 v%d, 16, v%d" % (lo, t4))
        a("v_and_b32 v%d, 0xffff0000, v%d" % (hi, t4))
        a("v_mul_f32 v%d, v%d, v%d" % (lo, lo, t3))
        a("v_mul_f32 v%d, v%d, v%d" % (hi, hi, t3))
        a("v_cvt_pk_bf16_f32 v%d, v%d, v%d" % (raw + i, lo, hi))


N_QKV = 3072
N_WO = 1024
N_GU = 896
N_WD = 448
N_W = N_QKV + N_WO + N_GU + N_WD
N_ZERO = 512 + 16 + 8
N_PREP = N_W + 128 + N_ZERO
PREP_LDS = 4 * 4608


def gen_prep(a):
    kernel_begin(a, "prep_kernel")
    a("s_load_dwordx4 s[4:7], s[0:1], %d" % KA_WQ)
    a("s_load_dwordx4 s[12:15], s[0:1], %d" % KA_WV)
    a("s_load_dwordx4 s[16:19], s[0:1], %d" % KA_WG)
    a("s_load_dwordx2 s[20:21], s[0:1], %d" % KA_WD)
    a("s_load_dwordx2 s[22:23], s[0:1], %d" % KA_WS)
    a("s_load_dwordx2 s[32:33], s[0:1], %d" % KA_X)
    lane_setup(a)
    a("s_lshl_b32 s31, s2, 2")
    a("s_add_u32 s31, s31, s3")
    a("s_waitcnt lgkmcnt(0)")
    srd(a, 40, 22, WS_BYTES)
    a("s_cmp_ge_u32 s31, %d" % N_PREP)
    a("s_cbranch_scc1 prep_end")
    a("s_cmp_ge_u32 s31, %d" % (N_W + 128))
    a("s_cbranch_scc1 prep_zero")
    a("s_cmp_ge_u32 s31, %d" % N_W)
    a("s_cbranch_scc1 prep_ln")
    a("s_cmp_ge_u32 s31, %d" % N_QKV)
    a("s_cbranch_scc1 prep_c1")
    a("s_lshr_b32 s34, s31, 10")
    a("s_mov_b64 s[24:25], s[4:5]")
    a("s_cmp_eq_u32 s34, 1")
    a("s_cselect_b64 s[24:25], s[6:7], s[24:25]")
    a("s_cmp_eq_u32 s34, 2")
    a("s_cselect_b64 s[24:25], s[12:13], s[24:25]")
    a("s_mov_b32 s26, %d" % (512 * 4096 * 2))
    a("s_mov_b32 s27, 8192")
    a("s_lshr_b32 s35, s31, 4")
    a("s_and_b32 s35, s35, 63")
    a("s_and_b32 s36, s31, 15")
    a("s_mov_b32 s37, 16")
    a("s_mov_b32 s29, 0")
    a("s_lshl_b32 s30, s34, 22")
    a("s_add_u32 s30, s30, %d" % WQKV_F)
    a("s_branch prep_go")
    a.label("prep_c1")
    a("s_cmp_ge_u32 s31, %d" % (N_QKV + N_WO))
    a("s_cbranch_scc1 prep_c2")
    a("s_sub_u32 s34, s31, %d" % N_QKV)
    a("s_mov_b64 s[24:25], s[14:15]")
    a("s_mov_b32 s26, %d" % (4096 * 512 * 2))
    a("s_mov_b32 s27, 1024")
    a("s_lshr_b32 s35, s34, 7")
    a("s_and_b32 s36, s34, 127")
    a("s_mov_b32 s37, 128")
    a("s_mov_b32 s29, 1")
    a("s_mov_b32 s30, %d" % WO_F)
    a("s_branch prep_go")
    a.label("prep_c2")
    a("s_cmp_ge_u32 s31, %d" % (N_QKV + N_WO + N_GU))
    a("s_cbranch_scc1 prep_c3")
    a("s_sub_u32 s34, s31, %d" % (N_QKV + N_WO))
    a("s_mov_b64 s[24:25], s[16:17]")
    a("s_mov_b32 s30, %d" % WGU_F)
    a("s_cmp_ge_u32 s34, 448")
    a("s_cselect_b64 s[24:25], s[18:19], s[24:25]")
    a("s_cselect_b32 s37, 448, 0")
    a("s_cselect_b32 s38, %d, 0" % (112 * 16384))
    a("s_sub_u32 s34, s34, s37")
    a("s_add_u32 s30, s30, s38")
    a("s_mov_b32 s26, %d" % (512 * 1792 * 2))
    a("s_mov_b32 s27, 3584")
    a("s_lshr_b32 s35, s34, 4")
    a("s_and_b32 s36, s34, 15")
    a("s_mov_b32 s37, 16")
    a("s_mov_b32 s29, 0")
    a("s_branch prep_go")
    a.label("prep_c3")
    a("s_sub_u32 s34, s31, %d" % (N_QKV + N_WO + N_GU))
    a("s_mov_b32 s30, %d" % WD_F)
    a("s_mov_b64 s[24:25], s[20:21]")
    a("s_mov_b32 s26, %d" % (1792 * 512 * 2))
    a("s_mov_b32 s27, 1024")
    a("s_mul_hi_u32 s35, s34, %d" % ((1 << 32) // 56 + 1))
    a("s_mul_i32 s37, s35, 56")
    a("s_sub_u32 s36, s34, s37")
    a("s_mov_b32 s37, 56")
    a("s_mov_b32 s29, 1")
    a.label("prep_go")
    a("s_mul_i32 s28, s36, s27")
    a("s_lshl_b32 s28, s28, 5")
    a("s_lshl_b32 s38, s35, 7")
    a("s_add_u32 s28, s28, s38")
    a("s_mov_b32 s8, s24")
    a("s_and_b32 s9, s25, 0xffff")
    a("s_mov_b32 s10, s26")
    a("s_mov_b32 s11, 0x00020000")
    a("v_lshrrev_b32 v4, 3, v1")
    a("v_mul_lo_u32 v5, v4, s27")
    a("v_and_b32 v6, 7, v1")
    a("v_lshl_add_u32 v5, v6, 4, v5")
    a("s_lshl_b32 s38, s27, 3")
    for i in range(4):
        a("buffer_load_dwordx4 %s, v5, s[8:11], s28 offen" % vr(16 + 4 * i, 4))
        if i < 3:
            a("s_add_u32 s28, s28, s38")
    a("s_mul_i32 s39, s3, 4608")
    a("v_mul_u32_u24 v7, 144, v4")
    a("v_lshl_add_u32 v7, v6, 4, v7")
    a("v_add_u32 v7, s39, v7")
    a("s_cmp_eq_u32 s29, 1")
    a("s_cselect_b32 s44, 2, 3")
    a("s_cselect_b32 s45, 16, 4")
    a("s_mul_i32 s45, s45, 144")
    a("v_lshlrev_b32 v8, s44, v2")
    a("v_lshrrev_b32 v9, 2, v3")
    a("v_add_u32 v8, v8, v9")
    a("v_mul_u32_u24 v8, 144, v8")
    a("v_and_b32 v9, 3, v1")
    a("v_lshl_add_u32 v8, v9, 3, v8")
    a("v_add_u32 v8, s39, v8")
    a("v_add_u32 v9, s45, v8")
    a("s_lshl_b32 s38, s35, 2")
    a("s_mul_i32 s38, s38, s37")
    a("s_add_u32 s38, s38, s36")
    a("s_lshl_b32 s38, s38, 10")
    a("s_add_u32 s30, s30, s38")
    a("s_lshl_b32 s37, s37, 10")
    a("v_lshlrev_b32 v5, 4, v1")
    for i in range(4):
        a("s_waitcnt vmcnt(%d)" % (3 - i))
        a("ds_write_b128 v7, %s offset:%d" % (vr(16 + 4 * i, 4), i * 8 * 144))
    a("s_waitcnt lgkmcnt(0)")
    for j in range(4):
        a("ds_read_b64_tr_b16 %s, v8 offset:%d" % (vr(32 + 4 * j, 2), j * 32))
        a("ds_read_b64_tr_b16 %s, v9 offset:%d" % (vr(34 + 4 * j, 2), j * 32))
    for j in range(4):
        a("s_waitcnt lgkmcnt(%d)" % (6 - 2 * j))
        a("buffer_store_dwordx4 %s, v5, s[40:43], s30 offen" % vr(32 + 4 * j, 4))
        if j < 3:
            a("s_add_u32 s30, s30, s37")
    a("s_branch prep_end")
    a.label("prep_ln")
    a("s_sub_u32 s34, s31, %d" % N_W)
    srd(a, 8, 32, 2048 * 512 * 2)
    a("v_lshlrev_b32 v4, 10, v3")
    a("v_lshl_add_u32 v4, v2, 4, v4")
    a("s_lshl_b32 s35, s34, 14")
    for kk in range(16):
        a("buffer_load_dwordx4 %s, v4, s[8:11], s35 offen offset:%d" % (vr(16 + 4 * kk, 4), kk * 64))
    a("v_xor_b32 v5, 16, v1")
    a("v_lshlrev_b32 v5, 2, v5")
    a("v_xor_b32 v6, 32, v1")
    a("v_lshlrev_b32 v6, 2, v6")
    a("s_waitcnt vmcnt(0)")
    layernorm_rows(a, 16, 16, 96, 8, 5, 6)
    a("v_lshlrev_b32 v5, 4, v1")
    a("s_add_u32 s35, s35, %d" % XN_F)
    for kk in range(16):
        if kk % 4 == 0 and kk:
            a("s_add_u32 s35, s35, 4096")
        a("buffer_store_dwordx4 %s, v5, s[40:43], s35 offen offset:%d" % (vr(16 + 4 * kk, 4), (kk % 4) * 1024))
    a("s_branch prep_end")
    a.label("prep_zero")
    a("s_sub_u32 s34, s31, %d" % (N_W + 128))
    a("s_lshl_b32 s35, s34, 10")
    a("s_cmp_ge_u32 s34, 512")
    a("s_cselect_b32 s36, %d, 0" % (MEMN - 512 * 1024 - RS_B))
    a("s_cmp_ge_u32 s34, 528")
    a("s_cselect_b32 s36, %d, s36" % (CNT - 528 * 1024 - RS_B))
    a("s_add_u32 s36, s36, %d" % RS_B)
    a("s_add_u32 s35, s35, s36")
    a("v_mov_b32 v8, 0")
    a("v_mov_b32 v9, 0")
    a("v_mov_b32 v10, 0")
    a("v_mov_b32 v11, 0")
    a("v_lshlrev_b32 v5, 4, v1")
    a("buffer_store_dwordx4 v[8:11], v5, s[40:43], s35 offen")
    a.label("prep_end")
    a("s_endpgm")
    return kd("prep_kernel", 224, 224)


ABUF = 32
BBUF = 96


def gemm_panel_core(a, swapped, vLds0, vLds1, vB, sB, srdB):
    def ldA(kk):
        buf = ABUF + (kk & 1) * 32
        for tt in range(8):
            off = tt * 16384 + kk * 1024
            base, o = (vLds0, off) if off < 65536 else (vLds1, off - 65536)
            a("ds_read_b128 %s, v%d offset:%d" % (vr(buf + 4 * tt, 4), base, o))

    def ldB(kk):
        buf = BBUF + (kk % 3) * 16
        if kk % 4 == 0 and kk:
            a("s_add_u32 s%d, s%d, 4096" % (sB, sB))
        for j in range(4):
            a("buffer_load_dwordx4 %s, v%d, s[%d:%d], s%d offen offset:%d" % (vr(buf + 4 * j, 4), vB + j, srdB, srdB + 3, sB, (kk % 4) * 1024))

    ldB(0)
    ldB(1)
    ldA(0)
    for kk in range(16):
        if kk + 2 < 16:
            ldB(kk + 2)
        if kk + 1 < 16:
            ldA(kk + 1)
        nv = 4 * min(2, 15 - kk)
        nl = 8 if kk + 1 < 16 else 0
        a("s_waitcnt vmcnt(%d) lgkmcnt(%d)" % (nv, nl))
        abuf = ABUF + (kk & 1) * 32
        bbuf = BBUF + (kk % 3) * 16
        for tt in range(8):
            for j in range(4):
                d = ar((tt * 4 + j) * 4, 4)
                c = "0" if kk == 0 else d
                x, y = vr(abuf + 4 * tt, 4), vr(bbuf + 4 * j, 4)
                if swapped:
                    mfma(a, d, x, y, c)
                else:
                    mfma(a, d, y, x, c)
    a.nop(10)


def read_acc_pack(a, dst, acc0, acc1):
    t = dst + 4
    for i in range(4):
        a("v_accvgpr_read_b32 v%d, a%d" % (t + i, acc0 + i))
        a("v_accvgpr_read_b32 v%d, a%d" % (t + 4 + i, acc1 + i))
    a("v_cvt_pk_bf16_f32 v%d, v%d, v%d" % (dst, t, t + 1))
    a("v_cvt_pk_bf16_f32 v%d, v%d, v%d" % (dst + 1, t + 2, t + 3))
    a("v_cvt_pk_bf16_f32 v%d, v%d, v%d" % (dst + 2, t + 4, t + 5))
    a("v_cvt_pk_bf16_f32 v%d, v%d, v%d" % (dst + 3, t + 6, t + 7))


def softmax12(a, S, tmp, vaddr16, vaddr32, P):
    m, t, s = tmp, tmp + 1, tmp + 2
    a("v_max3_f32 v%d, v%d, v%d, v%d" % (m, S, S + 1, S + 2))
    for i in range(3, 12, 2):
        if i + 1 < 12:
            a("v_max3_f32 v%d, v%d, v%d, v%d" % (m, m, S + i, S + i + 1))
        else:
            a("v_max_f32 v%d, v%d, v%d" % (m, m, S + i))
    xlane_max4(a, m, t, vaddr16, vaddr32)
    for i in range(12):
        a("v_sub_f32 v%d, v%d, v%d" % (S + i, S + i, m))
        a("v_mul_f32 v%d, 0x3fb8aa3b, v%d" % (S + i, S + i))
        a("v_exp_f32 v%d, v%d" % (S + i, S + i))
    a("s_nop 0")
    a("v_add_f32 v%d, v%d, v%d" % (s, S, S + 1))
    for i in range(2, 12):
        a("v_add_f32 v%d, v%d, v%d" % (s, s, S + i))
    xlane_sum4(a, s, t, vaddr16, vaddr32)
    a("v_rcp_f32 v%d, v%d" % (t, s))
    a("s_nop 0")
    a("v_fma_f32 v%d, -v%d, v%d, 2.0" % (m, s, t))
    a("v_mul_f32 v%d, v%d, v%d" % (t, t, m))
    for i in range(12):
        a("v_mul_f32 v%d, v%d, v%d" % (S + i, S + i, t))
    for i in range(6):
        a("v_cvt_pk_bf16_f32 v%d, v%d, v%d" % (P + i, S + 2 * i, S + 2 * i + 1))


def scale_round(a, v, tmp):
    round_bf16(a, v, v)
    a("v_mul_f32 v%d, 0x3db504f3, v%d" % (v, v))
    round_bf16(a, v, v)


LDS_SC = 0
LDS_OB = 12288
LDS_MF = 16384
LDS_WV = 32768
REC_LDS = 163840
SCO = os.environ.get("SCO", "")
LDO = os.environ.get("LDO", "sc1")


def xl_reduce(a, op, v, t0, t1):
    out = []
    out.append("v_mov_b32 v%d, v%d" % (t0, v))
    out.append("v_mov_b32 v%d, v%d" % (t1, v))
    out.append("s_nop 1")
    out.append("v_permlane32_swap_b32 v%d, v%d" % (t0, t1))
    out.append("s_nop 1")
    out.append("%s v%d, v%d, v%d" % (op, v, t0, t1))
    out.append("v_mov_b32 v%d, v%d" % (t0, v))
    out.append("v_mov_b32 v%d, v%d" % (t1, v))
    out.append("s_nop 1")
    out.append("v_permlane16_swap_b32 v%d, v%d" % (t0, t1))
    out.append("s_nop 1")
    out.append("%s v%d, v%d, v%d" % (op, v, t0, t1))
    return out


def softmax12_list(S, m, t, s, t0, t1, Px, Pm):
    o = []
    o.append("v_max3_f32 v%d, v%d, v%d, v%d" % (m, S, S + 1, S + 2))
    for i in range(3, 12, 2):
        if i + 1 < 12:
            o.append("v_max3_f32 v%d, v%d, v%d, v%d" % (m, m, S + i, S + i + 1))
        else:
            o.append("v_max_f32 v%d, v%d, v%d" % (m, m, S + i))
    o += xl_reduce(None, "v_max_f32", m, t0, t1)
    for i in range(12):
        o.append("v_sub_f32 v%d, v%d, v%d" % (S + i, S + i, m))
        o.append("v_mul_f32 v%d, 0x3fb8aa3b, v%d" % (S + i, S + i))
        o.append("v_exp_f32 v%d, v%d" % (S + i, S + i))
    o.append("s_nop 0")
    o.append("v_add_f32 v%d, v%d, v%d" % (s, S, S + 1))
    for i in range(2, 12):
        o.append("v_add_f32 v%d, v%d, v%d" % (s, s, S + i))
    o += xl_reduce(None, "v_add_f32", s, t0, t1)
    o.append("v_rcp_f32 v%d, v%d" % (t, s))
    o.append("s_nop 0")
    o.append("v_fma_f32 v%d, -v%d, v%d, 2.0" % (m, s, t))
    o.append("v_mul_f32 v%d, v%d, v%d" % (t, t, m))
    for i in range(12):
        o.append("v_mul_f32 v%d, v%d, v%d" % (S + i, S + i, t))
    for i in range(4):
        o.append("v_cvt_pk_bf16_f32 v%d, v%d, v%d" % (Px + i, S + 2 * i, S + 2 * i + 1))
    for i in range(2):
        o.append("v_cvt_pk_bf16_f32 v%d, v%d, v%d" % (Pm + i, S + 8 + 2 * i, S + 9 + 2 * i))
    return o


import os
STAMP = bool(os.environ.get("STAMP"))


def stamp(a, i):
    if not STAMP:
        return
    a("s_memtime s[60:61]")
    a("s_waitcnt lgkmcnt(0)")
    a("s_sub_u32 s62, s60, s63")
    a("s_add_u32 s%d, s%d, s62" % (64 + i, 64 + i))
    a("s_mov_b32 s63, s60")


TL = bool(os.environ.get("TL"))


def tl(a, slot, cond_head0=True):
    if not TL:
        return
    l = a.newlabel("tl")
    a("s_cmp_eq_u32 s3, 0")
    a("s_cbranch_scc0 %s" % l)
    a("s_memrealtime s[60:61]")
    a("s_waitcnt lgkmcnt(0)")
    a("v_mov_b32 v254, s60")
    a("v_mov_b32 v255, 0")
    a("s_mov_b64 exec, 1")
    a("buffer_atomic_umax v254, v255, s[48:51], 0 offen offset:%d" % (192 + 4 * slot))
    a("s_mov_b64 exec, -1")
    a.label(l)


def tl15(a, slot):
    if not TL:
        return
    l = a.newlabel("tlx")
    a("s_cmp_eq_u32 s4, 15")
    a("s_cbranch_scc0 %s" % l)
    tl(a, slot)
    a.label(l)


def gen_rec(a):
    kernel_begin(a, "rec_kernel")
    a("s_cmp_ge_u32 s2, 256")
    a("s_cbranch_scc1 rec_end2")
    a("s_load_dwordx2 s[22:23], s[0:1], %d" % KA_WS)
    a("s_load_dwordx2 s[24:25], s[0:1], %d" % KA_MEM0)
    a("s_load_dwordx2 s[26:27], s[0:1], %d" % KA_DBG)
    lane_setup(a)
    a("v_lshlrev_b32 v4, 4, v1")
    a("s_waitcnt lgkmcnt(0)")
    srd(a, 40, 22, WS_BYTES)
    srd(a, 44, 24, 8192)
    srd(a, 48, 26, 256)
    tl(a, 0)
    a("v_mov_b32 v18, 0")
    a("s_cmp_eq_u32 s3, 0")
    a("s_cbranch_scc0 rec_elect_done")
    a("s_getreg_b32 s5, hwreg(HW_REG_XCC_ID, 0, 4)")
    a("s_and_b32 s5, s5, 7")
    a("s_lshl_b32 s6, s5, 2")
    a("v_mov_b32 v16, 1")
    a("v_mov_b32 v17, s6")
    a("s_mov_b64 exec, 1")
    a("buffer_atomic_add v16, v17, s[48:51], 0 offen sc0")
    a("s_waitcnt vmcnt(0)")
    a("v_readfirstlane_b32 s6, v16")
    a("s_mov_b32 s7, -1")
    a("s_cmp_ge_u32 s6, 32")
    a("s_cbranch_scc1 rec_elect_pub")
    a("s_add_u32 s8, s5, 1")
    a("s_cmp_eq_u32 s6, 31")
    a("s_cbranch_scc0 rec_elect_poll")
    a("v_mov_b32 v16, s8")
    a("v_mov_b32 v17, 0")
    a("buffer_atomic_cmpswap v[16:17], v18, s[48:51], 0 offen offset:64 sc0")
    a("s_waitcnt vmcnt(0)")
    a.label("rec_elect_poll")
    a("s_sleep 1")
    a("buffer_load_dword v16, v18, s[48:51], 0 offen offset:64 sc0 sc1")
    a("s_waitcnt vmcnt(0)")
    a("v_readfirstlane_b32 s9, v16")
    a("s_cmp_eq_u32 s9, 0")
    a("s_cbranch_scc1 rec_elect_poll")
    a("s_cmp_eq_u32 s9, s8")
    a("s_cselect_b32 s7, s6, -1")
    a.label("rec_elect_pub")
    a("v_mov_b32 v16, s7")
    a("ds_write_b32 v18, v16")
    a("s_waitcnt lgkmcnt(0)")
    a("s_mov_b64 exec, -1")
    a.label("rec_elect_done")
    a("s_barrier")
    a("ds_read_b32 v16, v18")
    a("s_waitcnt lgkmcnt(0)")
    a("v_readfirstlane_b32 s2, v16")
    a("s_barrier")
    a("s_cmp_ge_u32 s2, 32")
    a("s_cbranch_scc1 worker_start")
    a("s_lshl_b32 s4, s2, 3")
    a("s_lshl_b32 s5, s3, 1")
    a("s_add_u32 s4, s4, s5")
    a("s_lshl_b32 s4, s4, 14")
    a("s_add_u32 s4, s4, %d" % WQKV_F)
    for m in range(2):
        for c in range(32):
            if c % 4 == 0:
                a("s_add_u32 s6, s4, %d" % (m * 256 * 16384 + c * 1024))
            a("buffer_load_dwordx4 %s, v4, s[40:43], s6 offen offset:%d" % (ar(m * 128 + c * 4, 4), (c % 4) * 1024))
    a("s_lshl_b32 s7, s3, 15")
    for c in range(32):
        a("s_add_u32 s8, s7, %d" % (LDS_WV + c * 1024))
        a("s_mov_b32 m0, s8")
        a("s_add_u32 s9, s4, %d" % (2 * 256 * 16384 + c * 1024))
        a("buffer_load_dwordx4 v4, s[40:43], s9 offen lds")
    a("s_lshl_b32 s6, s3, 20")
    a("s_lshl_b32 s7, s2, 12")
    a("s_add_u32 s6, s6, s7")
    a("s_add_u32 s6, s6, %d" % WO_F)
    for i in range(8):
        for sl in range(4):
            a("buffer_load_dwordx4 %s, v4, s[40:43], s6 offen offset:%d" % (vr(128 + (i * 4 + sl) * 4, 4), sl * 1024))
        if i < 7:
            a("s_add_u32 s6, s6, 131072")
    a("v_mov_b32 v16, 0")
    a("v_mov_b32 v17, 0")
    a("v_mov_b32 v18, 0")
    a("v_mov_b32 v19, 0")
    a("s_lshl_b32 s8, s3, 12")
    a("v_add_u32 v5, s8, v4")
    for c in range(4):
        a("ds_write_b128 v5, v[16:19] offset:%d" % (LDS_MF + c * 1024))
    a("v_mul_u32_u24 v9, 48, v1")
    for c in range(6):
        a("ds_write_b128 v9, v[16:19] offset:%d" % (LDS_SC + (c // 3) * 3072 + (c % 3) * 16))
    a("v_lshlrev_b32 v7, 10, v3")
    a("v_lshl_add_u32 v7, v2, 4, v7")
    a("s_lshl_b32 s8, s3, 15")
    a("s_add_u32 s8, s8, %d" % LDS_WV)
    a("v_add_u32 v8, s8, v4")
    a("v_mul_u32_u24 v9, 48, v1")
    a("s_mul_i32 s8, s3, 3072")
    a("v_add_u32 v10, s8, v9")
    a("s_lshl_b32 s8, s3, 10")
    a("v_add_u32 v11, s8, v4")
    a("v_lshlrev_b32 v12, 6, v3")
    a("v_lshl_add_u32 v12, v2, 4, v12")
    a("v_and_b32 v13, 7, v3")
    a("v_lshrrev_b32 v14, 3, v3")
    a("s_lshl_b32 s8, s3, 12")
    a("v_add_u32 v15, s8, v4")
    a("v_lshl_add_u32 v13, v2, 4, v13")
    a("v_lshlrev_b32 v13, 4, v13")
    a("v_lshl_add_u32 v13, v14, 10, v13")
    a("s_lshl_b32 s8, s3, 12")
    a("v_add_u32 v13, s8, v13")
    a("v_lshrrev_b32 v14, 2, v1")
    a("v_lshlrev_b32 v14, 4, v14")
    a("v_and_b32 v0, 1, v1")
    a("v_lshl_add_u32 v14, v0, 10, v14")
    a("v_bfe_u32 v0, v1, 1, 1")
    a("v_lshl_add_u32 v14, v0, 8, v14")
    a("s_lshr_b32 s8, s2, 3")
    a("s_lshl_b32 s32, s8, 12")
    a("s_bfe_u32 s8, s2, 0x10002")
    a("s_lshl_b32 s8, s8, 11")
    a("s_add_u32 s32, s32, s8")
    a("s_bfe_u32 s8, s2, 0x10001")
    a("s_lshl_b32 s8, s8, 7")
    a("s_add_u32 s32, s32, s8")
    a("s_and_b32 s8, s2, 1")
    a("s_lshl_b32 s8, s8, 9")
    a("s_add_u32 s32, s32, s8")
    a("s_add_u32 s32, s32, %d" % MEMN)
    a("s_mov_b32 s20, 0")
    a("s_mov_b32 s33, 0")
    a("s_lshl_b32 s21, s2, 13")
    a("s_mov_b32 s30, 0xffffff00")
    a("s_mov_b32 s31, 0x07060302")
    a("s_waitcnt vmcnt(0) lgkmcnt(0)")
    a("s_barrier")
    if STAMP:
        for i in range(12):
            a("s_mov_b32 s%d, 0" % (64 + i))
        a("s_memtime s[60:61]")
        a("s_waitcnt lgkmcnt(0)")
        a("s_mov_b32 s63, s60")
    tl(a, 1)
    a.label("rec_loop")
    stamp(a, 0)
    a("s_lshl_b32 s8, s20, 18")
    a("s_add_u32 s8, s8, s21")
    a("s_lshl_b32 s9, s3, 11")
    a("s_add_u32 s8, s8, s9")
    for i in range(4):
        a("ds_read_b128 %s, v8 offset:%d" % (vr(48 + 4 * i, 4), i * 1024))
    a("s_cmp_eq_u32 s20, 0")
    a("s_cbranch_scc0 rec_poll_ag")
    wait_counter(a, 20, C_KV, 32, 96, False)
    tl(a, 4)
    a("s_add_u32 s9, s8, %d" % K_F)
    a("buffer_load_dwordx4 v[16:19], v4, s[40:43], s9 offen %s" % RD)
    a("buffer_load_dwordx4 v[20:23], v4, s[40:43], s9 offen offset:1024 %s" % RD)
    a("s_add_u32 s9, s8, %d" % V_F)
    a("buffer_load_dwordx4 v[24:27], v4, s[40:43], s9 offen %s" % RD)
    a("buffer_load_dwordx4 v[28:31], v4, s[40:43], s9 offen offset:1024 %s" % RD)
    for kk in range(16):
        a("buffer_load_dwordx4 %s, v7, s[44:47], 0 offen offset:%d" % (vr(64 + 4 * kk, 4), kk * 64))
    a("s_waitcnt vmcnt(0)")
    a("s_branch rec_mem_done")
    a.label("rec_poll_ag")
    a("s_mov_b32 s10, 0")
    a("s_mov_b32 s9, %d" % MEMN)
    a.label("rec_poll_ag_l")
    a("buffer_load_dwordx4 v[96:99], v15, s[40:43], s9 offen %s" % LDO)
    a("buffer_load_dwordx4 v[100:103], v15, s[40:43], s9 offen offset:1024 %s" % LDO)
    a("buffer_load_dwordx4 v[104:107], v15, s[40:43], s9 offen offset:2048 %s" % LDO)
    a("buffer_load_dwordx4 v[108:111], v15, s[40:43], s9 offen offset:3072 %s" % LDO)
    a("s_add_u32 s10, s10, 1")
    a("s_waitcnt vmcnt(0)")
    for i in range(16):
        a("v_xor_b32 v%d, s20, v%d" % (112 + i, 96 + i))
    for i in range(0, 15, 3):
        pass
    a("v_or3_b32 v112, v112, v113, v114")
    a("v_or3_b32 v115, v115, v116, v117")
    a("v_or3_b32 v118, v118, v119, v120")
    a("v_or3_b32 v121, v121, v122, v123")
    a("v_or3_b32 v124, v124, v125, v126")
    a("v_or3_b32 v112, v112, v115, v118")
    a("v_or3_b32 v121, v121, v124, v127")
    a("v_or_b32 v112, v112, v121")
    a("v_and_b32 v112, 0xffff, v112")
    a("v_cmp_eq_u32 vcc, 0, v112")
    a("s_cmp_gt_u32 s10, 0x200000")
    a("s_cbranch_scc1 rec_end2")
    a("s_cmp_eq_u64 vcc, exec")
    a("s_cbranch_scc0 rec_poll_ag_l")
    stamp(a, 1)
    if STAMP:
        a("s_add_u32 s74, s74, s10")
    for j in range(2):
        for i in range(4):
            a("v_perm_b32 v%d, v%d, v%d, s31" % (112 + j * 4 + i, 96 + j * 8 + 2 * i + 1, 96 + j * 8 + 2 * i))
    a("ds_write_b128 v13, v[112:115] offset:%d" % LDS_MF)
    a("ds_write_b128 v13, v[116:119] offset:%d" % (LDS_MF + 2048))
    a("s_waitcnt lgkmcnt(0)")
    a("s_barrier")
    for kk in range(16):
        a("ds_read_b128 %s, v4 offset:%d" % (vr(64 + 4 * kk, 4), LDS_MF + kk * 1024))
    a.label("rec_mem_done")
    stamp(a, 2)
    for c in range(32):
        et, kk = c // 16, c % 16
        buf = 48 + 4 * (c % 4)
        if c < 16:
            n = min(15, (15 - c) + min(c, 3) if c < 4 else min(3, 15))
            if c >= 4:
                n = min(3, 15 - c + 3)
            a("s_waitcnt lgkmcnt(%d)" % n)
        else:
            a("s_waitcnt lgkmcnt(%d)" % min(3, 31 - c))
        d = vr(32 + et * 4, 4)
        mfma(a, d, vr(64 + 4 * kk, 4), vr(buf, 4), "0" if kk == 0 else d)
        if c + 4 < 32:
            a("ds_read_b128 %s, v8 offset:%d" % (vr(buf, 4), (c + 4) * 1024))
    for kk in range(16):
        for m in range(2):
            for et in range(2):
                d = vr(48 + m * 8 + et * 4, 4)
                mfma(a, d, ar(m * 128 + (et * 16 + kk) * 4, 4), vr(64 + 4 * kk, 4), "0" if kk == 0 else d)
    stamp(a, 3)
    a("v_cvt_pk_bf16_f32 v40, v32, v33")
    a("v_cvt_pk_bf16_f32 v41, v34, v35")
    a("v_mov_b32 v42, 0")
    a("v_mov_b32 v43, 0")
    a("v_cvt_pk_bf16_f32 v44, v36, v37")
    a("v_cvt_pk_bf16_f32 v45, v38, v39")
    a("v_mov_b32 v46, 0")
    a("v_mov_b32 v47, 0")
    a("s_add_u32 s9, s8, %d" % VM_F)
    a("buffer_store_dwordx4 v[40:43], v4, s[40:43], s9 offen %s" % WT)
    a("buffer_store_dwordx4 v[44:47], v4, s[40:43], s9 offen offset:1024 %s" % WT)
    a("v_cvt_pk_bf16_f32 v32, v48, v49")
    a("v_cvt_pk_bf16_f32 v33, v50, v51")
    a("v_cvt_pk_bf16_f32 v34, v52, v53")
    a("v_cvt_pk_bf16_f32 v35, v54, v55")
    a("v_cvt_pk_bf16_f32 v36, v56, v57")
    a("v_cvt_pk_bf16_f32 v37, v58, v59")
    a("v_cvt_pk_bf16_f32 v38, v60, v61")
    a("v_cvt_pk_bf16_f32 v39, v62, v63")
    a("s_lshl_b32 s9, s20, 17")
    a("s_lshl_b32 s11, s2, 12")
    a("s_add_u32 s9, s9, s11")
    a("s_lshl_b32 s11, s3, 10")
    a("s_add_u32 s9, s9, s11")
    a("s_add_u32 s9, s9, %d" % KM_F)
    a("s_waitcnt vmcnt(4)")
    mfma(a, vr(48, 4), vr(16, 4), vr(32, 4), "0")
    mfma(a, vr(52, 4), vr(20, 4), vr(32, 4), "0")
    mfma(a, vr(56, 4), vr(36, 4), vr(32, 4), "0")
    a("buffer_store_dwordx4 v[36:39], v4, s[40:43], s9 offen %s" % WT)
    a.nop(7)
    a("ds_write_b128 v10, v[48:51] offset:%d" % LDS_SC)
    a("ds_write_b128 v10, v[52:55] offset:%d" % (LDS_SC + 16))
    a("ds_write_b128 v10, v[56:59] offset:%d" % (LDS_SC + 32))
    a("s_waitcnt lgkmcnt(0)")
    a("s_barrier")
    stamp(a, 4)
    for w in range(4):
        for q in range(3):
            a("ds_read_b128 %s, v9 offset:%d" % (vr(64 + w * 12 + q * 4, 4), LDS_SC + w * 3072 + q * 16))
    a("s_mov_b32 s16, 0x3db504f3")
    a("s_mov_b32 s17, 0x3db504f3")
    a("s_waitcnt lgkmcnt(6)")
    for i in range(0, 12, 2):
        a("v_pk_add_f32 v[%d:%d], v[%d:%d], v[%d:%d]" % (64 + i, 65 + i, 64 + i, 65 + i, 76 + i, 77 + i))
    a("s_waitcnt lgkmcnt(0)")
    for i in range(0, 12, 2):
        a("v_pk_add_f32 v[%d:%d], v[%d:%d], v[%d:%d]" % (88 + i, 89 + i, 88 + i, 89 + i, 100 + i, 101 + i))
    for i in range(0, 12, 2):
        a("v_pk_add_f32 v[%d:%d], v[%d:%d], v[%d:%d]" % (64 + i, 65 + i, 64 + i, 65 + i, 88 + i, 89 + i))
    for i in range(0, 12, 2):
        a("v_cvt_pk_bf16_f32 v%d, v%d, v%d" % (76 + i // 2, 64 + i, 65 + i))
    for i in range(0, 12, 2):
        a("v_lshlrev_b32 v%d, 16, v%d" % (64 + i, 76 + i // 2))
        a("v_and_b32 v%d, 0xffff0000, v%d" % (65 + i, 76 + i // 2))
    for i in range(0, 12, 2):
        a("v_pk_mul_f32 v[%d:%d], v[%d:%d], s[16:17]" % (64 + i, 65 + i, 64 + i, 65 + i))
    for i in range(0, 12, 2):
        a("v_cvt_pk_bf16_f32 v%d, v%d, v%d" % (76 + i // 2, 64 + i, 65 + i))
    for i in range(0, 12, 2):
        a("v_lshlrev_b32 v%d, 16, v%d" % (64 + i, 76 + i // 2))
        a("v_and_b32 v%d, 0xffff0000, v%d" % (65 + i, 76 + i // 2))
    a("v_mov_b32 v80, 0xce6e6b28")
    a("v_cmp_gt_u32 vcc, 2, v2")
    a("s_nop 1")
    for i in range(8, 12):
        a("v_cndmask_b32 v%d, v80, v%d, vcc" % (64 + i, 64 + i))
    a("v_max3_f32 v80, v64, v65, v66")
    a("v_max3_f32 v81, v67, v68, v69")
    a("v_max3_f32 v82, v70, v71, v72")
    a("v_max3_f32 v83, v73, v74, v75")
    a("v_max3_f32 v80, v80, v81, v82")
    a("v_max_f32 v80, v80, v83")
    for l in xl_reduce(None, "v_max_f32", 80, 83, 84):
        a(l)
    a("v_mul_f32 v81, 0xbfb8aa3b, v80")
    a("s_mov_b32 s16, 0x3fb8aa3b")
    for i in range(12):
        a("v_fma_f32 v%d, v%d, s16, v81" % (64 + i, 64 + i))
    for i in range(12):
        a("v_exp_f32 v%d, v%d" % (64 + i, 64 + i))
    a("s_nop 0")
    a("v_pk_add_f32 v[76:77], v[64:65], v[66:67]")
    a("v_pk_add_f32 v[78:79], v[68:69], v[70:71]")
    a("v_pk_add_f32 v[82:83], v[72:73], v[74:75]")
    a("v_pk_add_f32 v[76:77], v[76:77], v[78:79]")
    a("v_pk_add_f32 v[76:77], v[76:77], v[82:83]")
    a("v_add_f32 v82, v76, v77")
    for l in xl_reduce(None, "v_add_f32", 82, 83, 84):
        a(l)
    a("v_rcp_f32 v80, v82")
    a("s_nop 0")
    a("v_fma_f32 v81, -v82, v80, 2.0")
    a("v_mul_f32 v80, v80, v81")
    a("v_mov_b32 v81, v80")
    for i in range(0, 12, 2):
        a("v_pk_mul_f32 v[%d:%d], v[%d:%d], v[80:81]" % (64 + i, 65 + i, 64 + i, 65 + i))
    for i in range(4):
        a("v_cvt_pk_bf16_f32 v%d, v%d, v%d" % (88 + i, 64 + 2 * i, 65 + 2 * i))
    for i in range(2):
        a("v_cvt_pk_bf16_f32 v%d, v%d, v%d" % (92 + i, 72 + 2 * i, 73 + 2 * i))
    a("v_mov_b32 v94, 0")
    a("v_mov_b32 v95, 0")
    stamp(a, 5)
    a("s_waitcnt vmcnt(3)")
    a("s_nop 0")
    for et in range(2):
        mfma(a, vr(32 + 4 * et, 4), vr(24 + 4 * et, 4), vr(88, 4), "0")
        mfma(a, vr(32 + 4 * et, 4), vr(40 + 4 * et, 4), vr(92, 4), vr(32 + 4 * et, 4))
    a("s_cmp_eq_u32 s20, 63")
    a("s_cbranch_scc1 rec_end")
    a("s_add_u32 s14, s20, 1")
    a("s_and_b32 s15, s14, 3")
    a("s_or_b32 s15, s15, s33")
    a("s_cmp_eq_u32 s15, 0")
    a("s_cbranch_scc0 rec_kv_ready")
    a("s_lshr_b32 s14, s14, 2")
    wait_counter(a, 14, C_KV, 32, 96, False)
    a("s_mov_b32 s80, %d" % (CNT + 64 * (C_KV + 15)))
    a("buffer_load_dword v96, v97, s[40:43], s80 offen %s" % RD)
    a("s_waitcnt vmcnt(0)")
    a("v_readfirstlane_b32 s81, v96")
    a("s_cmp_ge_u32 s81, 32")
    a("s_cselect_b32 s33, 1, 0")
    a.label("rec_kv_ready")
    a("s_add_u32 s9, s8, %d" % (K_F + 262144))
    a("buffer_load_dwordx4 v[16:19], v4, s[40:43], s9 offen %s" % RD)
    a("buffer_load_dwordx4 v[20:23], v4, s[40:43], s9 offen offset:1024 %s" % RD)
    a("s_add_u32 s9, s8, %d" % (V_F + 262144))
    a("s_nop 3")
    a("buffer_load_dwordx4 v[24:27], v4, s[40:43], s9 offen %s" % RD)
    a("buffer_load_dwordx4 v[28:31], v4, s[40:43], s9 offen offset:1024 %s" % RD)
    a("v_cvt_pk_bf16_f32 v32, v32, v33")
    a("v_cvt_pk_bf16_f32 v33, v34, v35")
    a("v_cvt_pk_bf16_f32 v34, v36, v37")
    a("v_cvt_pk_bf16_f32 v35, v38, v39")
    a("ds_write_b128 v11, v[32:35] offset:%d" % LDS_OB)
    a("s_waitcnt lgkmcnt(0)")
    a("s_barrier")
    stamp(a, 6)
    for sl in range(4):
        a("ds_read_b128 %s, v4 offset:%d" % (vr(48 + 4 * sl, 4), LDS_OB + sl * 1024))
    a("s_add_u32 s20, s20, 1")
    a("s_lshl_b32 s9, s3, 17")
    a("s_lshl_b32 s11, s2, 9")
    a("s_add_u32 s9, s9, s11")
    a("s_add_u32 s9, s9, %d" % RS_B)
    a("v_mov_b32 v0, s20")
    a("v_cmp_gt_u32 vcc, 8, v3")
    a("s_mov_b64 s[12:13], vcc")
    def wo_tile(i):
        for sl in range(4):
            if i == 0:
                a("s_waitcnt lgkmcnt(%d)" % (3 - sl))
            d = vr(64 + 4 * i, 4)
            mfma(a, d, vr(128 + (i * 4 + sl) * 4, 4), vr(48 + 4 * sl, 4), "0" if sl == 0 else d)
    def wo_store(i):
        for q in range(4):
            a("v_and_or_b32 v%d, v%d, s30, v0" % (64 + 4 * i + q, 64 + 4 * i + q))
        a("s_mov_b64 exec, s[12:13]")
        a("buffer_store_dwordx4 %s, v12, s[40:43], s9 offen %s" % (vr(64 + 4 * i, 4), SCO))
        a("s_mov_b64 exec, -1")
        a("s_add_u32 s9, s9, 16384")
    wo_tile(0)
    wo_tile(1)
    wo_tile(2)
    for i in range(8):
        wo_store(i)
        if i + 3 < 8:
            wo_tile(i + 3)
        elif i < 7:
            a.nop(8)
    stamp(a, 7)
    a("s_mov_b32 s10, 0")
    a("s_lshl_b32 s9, s2, 14")
    a("s_lshl_b32 s11, s3, 12")
    a("s_add_u32 s9, s9, s11")
    a("s_add_u32 s9, s9, %d" % RS_B)
    a.label("rec_poll_rs")
    for k in range(4):
        a("buffer_load_dwordx4 %s, v4, s[40:43], s9 offen offset:%d %s" % (vr(64 + 4 * k, 4), k * 1024, LDO))
    a("s_add_u32 s10, s10, 1")
    a("v_mov_b32 v48, 0")
    for k in range(4):
        a("s_waitcnt vmcnt(%d)" % (3 - k))
        b = 64 + 4 * k
        a("v_xor_b32 v49, s20, v%d" % b)
        a("v_xor_b32 v50, s20, v%d" % (b + 1))
        a("v_or3_b32 v48, v48, v49, v50")
        a("v_xor_b32 v49, s20, v%d" % (b + 2))
        a("v_xor_b32 v50, s20, v%d" % (b + 3))
        a("v_or3_b32 v48, v48, v49, v50")
        if k:
            a("v_pk_add_f32 v[64:65], v[64:65], v[%d:%d]" % (b, b + 1))
            a("v_pk_add_f32 v[66:67], v[66:67], v[%d:%d]" % (b + 2, b + 3))
    a("v_and_b32 v48, 0xff, v48")
    a("v_cmp_eq_u32 vcc, 0, v48")
    a("s_cmp_gt_u32 s10, 0x200000")
    a("s_cbranch_scc1 rec_end2")
    a("s_cmp_eq_u64 vcc, exec")
    a("s_cbranch_scc0 rec_poll_rs")
    a("ds_write_b128 v11, v[64:67] offset:%d" % LDS_SC)
    a("s_waitcnt lgkmcnt(0)")
    a("s_barrier")
    a("s_cmp_eq_u32 s3, 0")
    a("s_cbranch_scc0 rec_wait0")
    for w in range(4):
        a("ds_read_b128 %s, v4 offset:%d" % (vr(64 + 4 * w, 4), LDS_SC + w * 1024))
    a("s_waitcnt lgkmcnt(0)")
    a("v_pk_add_f32 v[64:65], v[64:65], v[68:69]")
    a("v_pk_add_f32 v[66:67], v[66:67], v[70:71]")
    a("v_pk_add_f32 v[72:73], v[72:73], v[76:77]")
    a("v_pk_add_f32 v[74:75], v[74:75], v[78:79]")
    a("v_pk_add_f32 v[64:65], v[64:65], v[72:73]")
    a("v_pk_add_f32 v[66:67], v[66:67], v[74:75]")
    stamp(a, 8)
    if STAMP:
        a("s_add_u32 s75, s75, s10")
    for i in range(4):
        a("v_mov_b32 v%d, v%d" % (68 + i, 64 + i))
    a("s_nop 1")
    for i in range(4):
        a("v_permlane32_swap_b32 v%d, v%d" % (64 + i, 68 + i))
    a("s_nop 1")
    for i in range(4):
        a("v_add_f32 v%d, v%d, v%d" % (64 + i, 64 + i, 68 + i))
    for i in range(4):
        a("v_cvt_pk_bf16_f32 v%d, v%d, v%d" % (64 + i, 64 + i, 64 + i))
        a("v_lshl_or_b32 v%d, v%d, 16, v0" % (64 + i, 64 + i))
    a("s_mov_b32 exec_hi, 0")
    a("buffer_store_dwordx4 v[64:67], v14, s[40:43], s32 offen %s" % SCO)
    a("s_mov_b64 exec, -1")
    stamp(a, 9)
    a.label("rec_wait0")
    a("s_and_b32 s15, s20, 3")
    a("s_cmp_eq_u32 s15, 0")
    a("s_cbranch_scc1 rec_sig")
    if not os.environ.get("NOW0"):
        a("s_barrier")
    a("s_branch rec_loop")
    a.label("rec_sig")
    a("s_lshr_b32 s14, s20, 2")
    a("s_sub_u32 s14, s14, 1")
    signal_counter(a, 14, C_REC, 96)
    a("s_branch rec_loop")
    a.label("rec_end")
    tl(a, 2)
    a("s_mov_b32 s14, 15")
    signal_counter(a, 14, C_REC, 96)
    if STAMP:
        a("s_or_b32 s8, s2, s3")
        a("s_cmp_eq_u32 s8, 0")
        a("s_cbranch_scc0 rec_end2")
        a("v_mov_b32 v16, 0")
        a("s_mov_b64 exec, 1")
        for i in range(12):
            a("v_mov_b32 v17, s%d" % (64 + i))
            a("buffer_store_dword v17, v16, s[48:51], 0 offen offset:%d" % (128 + 4 * i))
    a("s_mov_b64 exec, -1")
    a("s_branch worker_start")
    a.label("rec_end2")
    a("s_endpgm")
    return kd("rec_kernel", 512, 256)


def wait_counter(a, sidx, cbase, target, t=16, solo=True):
    l = a.newlabel("wc")
    if solo:
        a("s_cmp_eq_u32 s3, 0")
        a("s_cbranch_scc0 %s_ok" % l)
    a("s_add_u32 s80, s%d, %d" % (sidx, cbase))
    a("s_lshl_b32 s80, s80, 6")
    a("s_add_u32 s80, s80, %d" % CNT)
    a("v_mov_b32 v%d, 0" % (t + 1))
    a("s_mov_b32 s82, 0")
    a.label(l)
    a("buffer_load_dword v%d, v%d, s[40:43], s80 offen %s" % (t, t + 1, RD))
    a("s_add_u32 s82, s82, 1")
    a("s_waitcnt vmcnt(0)")
    a("v_readfirstlane_b32 s81, v%d" % t)
    a("s_cmp_ge_u32 s81, %d" % target)
    a("s_cbranch_scc1 %s_ok" % l)
    a("s_cmp_gt_u32 s82, 0x400000")
    a("s_cbranch_scc1 rec_end2")
    a("s_sleep %d" % (6 if solo else 2))
    a("s_branch %s" % l)
    a.label(l + "_ok")
    if solo:
        a("s_barrier")


def signal_counter(a, sidx, cbase, t=16):
    l = a.newlabel("sg")
    a("s_waitcnt vmcnt(0)")
    a("s_barrier")
    a("s_cmp_eq_u32 s3, 0")
    a("s_cbranch_scc0 %s" % l)
    a("s_add_u32 s80, s%d, %d" % (sidx, cbase))
    a("s_lshl_b32 s80, s80, 6")
    a("s_add_u32 s80, s80, %d" % CNT)
    a("v_mov_b32 v%d, 1" % t)
    a("v_mov_b32 v%d, 0" % (t + 1))
    a("s_mov_b64 exec, 1")
    a("buffer_atomic_add v%d, v%d, s[40:43], s80 offen" % (t, t + 1))
    a("s_mov_b64 exec, -1")
    a.label(l)


def body_qkv(a):
    a("s_cmp_eq_u32 s90, s4")
    a("s_cbranch_scc1 qkv_have_panel")
    a("s_mov_b32 s90, s4")
    a("s_barrier")
    a("s_lshl_b32 s6, s4, 17")
    a("s_lshl_b32 s7, s3, 15")
    a("s_add_u32 s6, s6, s7")
    if XN_F:
        a("s_add_u32 s6, s6, %d" % XN_F)
    for c in range(32):
        a("s_add_u32 s8, s7, %d" % (c * 1024))
        a("s_mov_b32 m0, s8")
        a("s_add_u32 s9, s6, %d" % (c * 1024))
        a("buffer_load_dwordx4 v4, s[40:43], s9 offen lds")
    a("s_waitcnt vmcnt(0)")
    a("s_barrier")
    a.label("qkv_have_panel")
    a("s_lshl_b32 s12, s11, 4")
    a("s_lshl_b32 s13, s3, 2")
    a("s_add_u32 s12, s12, s13")
    a("s_lshl_b32 s14, s12, 14")
    a("s_add_u32 s14, s14, %d" % WQKV_F)
    for j in range(4):
        a("v_add_u32 v%d, %d, v4" % (8 + j, j * 16384))
    a("s_lshr_b32 s15, s12, 3")
    a("s_and_b32 s15, s15, 31")
    a("s_and_b32 s16, s12, 7")
    a("s_cmp_ge_u32 s11, 32")
    a("s_cbranch_scc1 qkv_v")
    gemm_panel_core(a, False, 4, 5, 8, 14, 40)
    a("s_cmp_ge_u32 s11, 16")
    a("s_cselect_b32 s17, %d, 0" % (K_F - Q_F))
    a("s_add_u32 s17, s17, %d" % Q_F)
    a("s_lshl_b32 s18, s4, 20")
    a("s_add_u32 s17, s17, s18")
    a("s_lshl_b32 s18, s15, 13")
    a("s_add_u32 s17, s17, s18")
    a("s_lshl_b32 s18, s16, 10")
    a("s_add_u32 s17, s17, s18")
    for tt in range(8):
        for p in range(2):
            d = 16 + 16 * (p & 1)
            read_acc_pack(a, d, (tt * 4 + 2 * p) * 4, (tt * 4 + 2 * p + 1) * 4)
            off = (tt // 2) * 262144 + p * 2048 + (tt % 2) * 1024
            a("s_add_u32 s18, s17, %d" % off)
            a("buffer_store_dwordx4 %s, v4, s[40:43], s18 offen %s" % (vr(d, 4), WT))
    a("s_branch qkv_sig")
    a.label("qkv_v")
    gemm_panel_core(a, True, 4, 5, 8, 14, 40)
    a("s_lshl_b32 s17, s4, 20")
    a("s_add_u32 s17, s17, %d" % V_F)
    a("s_lshl_b32 s18, s15, 13")
    a("s_add_u32 s17, s17, s18")
    a("s_lshl_b32 s18, s16, 10")
    a("s_add_u32 s17, s17, s18")
    for sg in range(4):
        for j in range(4):
            d = 16 + 16 * (j & 1)
            read_acc_pack(a, d, ((2 * sg) * 4 + j) * 4, ((2 * sg + 1) * 4 + j) * 4)
            off = sg * 262144 + j * 1024
            a("s_add_u32 s18, s17, %d" % off)
            a("buffer_store_dwordx4 %s, v4, s[40:43], s18 offen %s" % (vr(d, 4), WT))
    a.label("qkv_sig")
    a("s_cmp_ge_u32 s11, 16")
    a("s_cselect_b32 s19, %d, %d" % (C_KV, C_QD))
    a("s_add_u32 s19, s19, s4")
    signal_counter(a, 19, 0)


def body_attn(a):
    wait_counter(a, 4, C_QD, 16)
    wait_counter(a, 4, C_KV, 32)
    a("s_lshl_b32 s6, s4, 7")
    a("s_lshl_b32 s7, s5, 2")
    a("s_add_u32 s6, s6, s7")
    a("s_add_u32 s10, s6, s3")
    a("s_lshl_b32 s11, s10, 13")
    a("s_lshl_b32 s12, s10, 12")
    def ld(dst, base, n):
        for c in range(n):
            if c % 4 == 0:
                a("s_add_u32 s7, s%d, %d" % (base[0], base[1] + c * 1024))
            a("buffer_load_dwordx4 %s, v4, s[40:43], s7 offen offset:%d %s" % (vr(dst + 4 * c, 4), (c % 4) * 1024, RD))
    ld(32, (11, Q_F), 8)
    ld(64, (11, K_F), 8)
    ld(112, (11, V_F), 8)
    wait_counter(a, 4, C_REC, 32)
    ld(96, (12, KM_F), 4)
    ld(144, (11, VM_F), 8)
    a("s_waitcnt vmcnt(8)")
    for tq in range(2):
        for sl in range(4):
            q = vr(32 + (sl * 2 + tq) * 4, 4)
            for jt in range(2):
                d = vr(176 + tq * 12 + jt * 4, 4)
                mfma(a, d, vr(64 + (sl * 2 + jt) * 4, 4), q, "0" if sl == 0 else d)
            d = vr(176 + tq * 12 + 8, 4)
            mfma(a, d, vr(96 + sl * 4, 4), q, "0" if sl == 0 else d)
    a.nop(8)
    a("v_mov_b32 v8, 0xce6e6b28")
    a("v_lshlrev_b32 v9, 2, v2")
    a("v_add_u32 v11, 64, v3")
    for tq in range(2):
        S = 176 + tq * 12
        for i in range(12):
            scale_round(a, S + i, 0)
        for idx in range(8):
            koff = 16 * (idx // 4) + idx % 4 - 16 * tq
            if koff <= -16:
                continue
            a("v_add_u32 v10, %d, v9" % (koff + 64))
            a("v_cmp_le_u32 vcc, v10, v11")
            a("s_nop 1")
            a("v_cndmask_b32 v%d, v8, v%d, vcc" % (S + idx, S + idx))
        a("v_cmp_gt_u32 vcc, 2, v2")
        a("s_nop 1")
        for i in range(8, 12):
            a("v_cndmask_b32 v%d, v8, v%d, vcc" % (S + i, S + i))
        for l in softmax12_list(S, 12, 13, 14, 15, 16, 200 + tq * 8, 204 + tq * 8):
            a(l)
        a("v_mov_b32 v%d, 0" % (206 + tq * 8))
        a("v_mov_b32 v%d, 0" % (207 + tq * 8))
    a("s_waitcnt vmcnt(0)")
    a.nop(2)
    for et in range(8):
        for tq in range(2):
            d = vr(32 + (et * 2 + tq) * 4, 4)
            mfma(a, d, vr(112 + et * 4, 4), vr(200 + tq * 8, 4), "0")
            mfma(a, d, vr(144 + et * 4, 4), vr(204 + tq * 8, 4), d)
    a.nop(8)
    a("s_lshr_b32 s7, s10, 5")
    a("s_and_b32 s8, s10, 31")
    a("s_lshl_b32 s7, s7, 18")
    a("s_lshl_b32 s8, s8, 12")
    a("s_add_u32 s7, s7, s8")
    a("s_add_u32 s7, s7, %d" % O_F)
    a("s_add_u32 s8, s7, 131072")
    for p in range(4):
        for tq in range(2):
            b0 = 32 + ((2 * p) * 2 + tq) * 4
            b1 = 32 + ((2 * p + 1) * 2 + tq) * 4
            d = 216 + ((p * 2 + tq) % 4) * 4
            a("v_cvt_pk_bf16_f32 v%d, v%d, v%d" % (d, b0, b0 + 1))
            a("v_cvt_pk_bf16_f32 v%d, v%d, v%d" % (d + 1, b0 + 2, b0 + 3))
            a("v_cvt_pk_bf16_f32 v%d, v%d, v%d" % (d + 2, b1, b1 + 1))
            a("v_cvt_pk_bf16_f32 v%d, v%d, v%d" % (d + 3, b1 + 2, b1 + 3))
            a("buffer_store_dwordx4 %s, v4, s[40:43], s%d offen offset:%d %s" % (vr(d, 4), 7 + tq, p * 1024, WT))
    signal_counter(a, 4, C_AT)


def body_splitk(a, name, nks, A_F, B_F, res_is_x):
    per = nks // 4
    a("s_mov_b32 s90, -1")
    a("s_lshr_b32 s10, s5, 4")
    a("s_lshl_b32 s11, s4, 3")
    a("s_add_u32 s10, s10, s11")
    a("s_and_b32 s11, s5, 15")
    a("s_mul_i32 s6, s10, %d" % (nks * 1024))
    a("s_mul_i32 s7, s3, %d" % (per * 1024))
    a("s_add_u32 s6, s6, s7")
    a("s_add_u32 s6, s6, %d" % A_F)
    a("s_mul_i32 s8, s11, %d" % (2 * nks * 1024))
    a("s_add_u32 s8, s8, s7")
    a("s_add_u32 s8, s8, %d" % B_F)
    a("v_add_u32 v8, %d, v4" % (nks * 1024))
    for ks in range(per):
        a("buffer_load_dwordx4 %s, v4, s[40:43], s8 offen offset:%d" % (ar(ks * 8, 4), (ks % 4) * 1024))
        a("buffer_load_dwordx4 %s, v8, s[40:43], s8 offen offset:%d" % (ar(ks * 8 + 4, 4), (ks % 4) * 1024))
        if ks % 4 == 3:
            a("s_add_u32 s8, s8, 4096")
    if res_is_x:
        wait_counter(a, 4, C_AT, 32)
    else:
        wait_counter(a, 4, C_F1, 56)
    for ks in range(per):
        a("buffer_load_dwordx4 %s, v4, s[40:43], s6 offen offset:%d %s" % (vr(32 + ks * 4, 4), (ks % 4) * 1024, RD))
        if ks % 4 == 3:
            a("s_add_u32 s6, s6, 4096")
    a("v_lshlrev_b32 v6, 10, v3")
    a("v_lshl_add_u32 v6, v2, 3, v6")
    a("s_lshl_b32 s9, s10, 14")
    a("s_lshl_b32 s12, s11, 6")
    a("s_add_u32 s9, s9, s12")
    rsrd = 44 if res_is_x else 40
    if not res_is_x:
        a("s_add_u32 s13, s9, %d" % H_B)
    else:
        a("s_mov_b32 s13, s9")
    for j in range(2):
        a("buffer_load_dwordx2 %s, v6, s[%d:%d], s13 offen offset:%d %s" % (vr(192 + j * 2, 2), rsrd, rsrd + 3, j * 32, "" if res_is_x else RD))
    for ks in range(per):
        a("s_waitcnt vmcnt(%d)" % (per - 1 - ks + 2))
        for j in range(2):
            d = vr(160 + j * 4, 4)
            mfma(a, d, ar(ks * 8 + 4 * j, 4), vr(32 + ks * 4, 4), "0" if ks == 0 else d)
    a.nop(8)
    a("s_cmp_eq_u32 s3, 0")
    a("s_cbranch_scc1 %s_w0" % name)
    a("s_sub_u32 s9, s3, 1")
    a("s_lshl_b32 s9, s9, 11")
    a("v_add_u32 v5, s9, v4")
    for t in range(2):
        a("ds_write_b128 v5, %s offset:%d" % (vr(160 + 4 * t, 4), t * 1024))
    a("s_waitcnt lgkmcnt(0)")
    a("s_barrier")
    a("s_branch %s_fin" % name)
    a.label("%s_w0" % name)
    a("s_barrier")
    for t in range(2):
        for w in range(3):
            a("ds_read_b128 %s, v4 offset:%d" % (vr(32 + (t * 3 + w) * 4, 4), w * 2048 + t * 1024))
    a("s_waitcnt vmcnt(0) lgkmcnt(0)")
    for t in range(2):
        for i in range(4):
            b = 32 + t * 12
            a("v_add_f32 v%d, v%d, v%d" % (b + i, b + i, b + 4 + i))
            a("v_add_f32 v%d, v%d, v%d" % (160 + 4 * t + i, 160 + 4 * t + i, b + 8 + i))
            a("v_add_f32 v%d, v%d, v%d" % (160 + 4 * t + i, 160 + 4 * t + i, b + i))
    if res_is_x:
        a("s_add_u32 s13, s9, %d" % H_B)
        osrd = 40
    else:
        a("s_mov_b32 s13, s9")
        osrd = 52
    for j in range(2):
        acc = 160 + 4 * j
        rr = 192 + 2 * j
        for q in range(4):
            round_bf16(a, acc + q, acc + q)
        a("v_lshlrev_b32 v32, 16, v%d" % rr)
        a("v_and_b32 v33, 0xffff0000, v%d" % rr)
        a("v_lshlrev_b32 v34, 16, v%d" % (rr + 1))
        a("v_and_b32 v35, 0xffff0000, v%d" % (rr + 1))
        for q in range(4):
            a("v_add_f32 v%d, v%d, v%d" % (acc + q, acc + q, 32 + q))
        a("v_cvt_pk_bf16_f32 v%d, v%d, v%d" % (rr, acc, acc + 1))
        a("v_cvt_pk_bf16_f32 v%d, v%d, v%d" % (rr + 1, acc + 2, acc + 3))
        a("buffer_store_dwordx2 %s, v6, s[%d:%d], s13 offen offset:%d %s" % (vr(rr, 2), osrd, osrd + 3, j * 32, WT if res_is_x else ""))
    a.label("%s_fin" % name)
    a("v_add_u32 v5, 0x10000, v4")
    if res_is_x:
        signal_counter(a, 4, C_WO)


def body_ffn1(a):
    a("s_mul_hi_u32 s10, s5, %d" % ((1 << 32) // 14 + 1))
    a("s_mul_i32 s11, s10, 14")
    a("s_sub_u32 s11, s5, s11")
    a("s_lshl_b32 s12, s11, 3")
    a("s_lshl_b32 s13, s3, 1")
    a("s_add_u32 s12, s12, s13")
    a("s_lshl_b32 s14, s12, 14")
    a("s_add_u32 s14, s14, %d" % WGU_F)
    a("v_add_u32 v9, 16384, v4")
    a("v_add_u32 v10, %d, v4" % (112 * 16384))
    a("v_add_u32 v11, %d, v4" % (113 * 16384))
    for kk in range(16):
        if kk % 4 == 0 and kk:
            a("s_add_u32 s14, s14, 4096")
        for j, vb in enumerate([4, 9, 10, 11]):
            a("buffer_load_dwordx4 %s, v%d, s[40:43], s14 offen offset:%d" % (ar((kk * 4 + j) * 4, 4), vb, (kk % 4) * 1024))
    wait_counter(a, 4, C_WO, 128)
    a("s_mov_b32 s90, -1")
    a("s_barrier")
    a("s_cmp_ge_u32 s3, 2")
    a("s_cbranch_scc1 ffn1_noln")
    a("v_xor_b32 v6, 16, v1")
    a("v_lshlrev_b32 v6, 2, v6")
    a("v_xor_b32 v7, 32, v1")
    a("v_lshlrev_b32 v7, 2, v7")
    a("v_lshlrev_b32 v8, 10, v3")
    a("v_lshl_add_u32 v8, v2, 4, v8")
    a("s_lshl_b32 s6, s4, 17")
    a("s_lshl_b32 s7, s10, 15")
    a("s_add_u32 s6, s6, s7")
    a("s_lshl_b32 s7, s3, 14")
    a("s_add_u32 s6, s6, s7")
    a("s_add_u32 s6, s6, %d" % H_B)
    for kk in range(16):
        a("buffer_load_dwordx4 %s, v8, s[40:43], s6 offen offset:%d %s" % (vr(32 + 4 * kk, 4), kk * 64, RD))
    a("s_waitcnt vmcnt(0)")
    layernorm_rows(a, 32, 16, 96, 16, 6, 7)
    a("v_add_u32 v9, s7, v4")
    for kk in range(16):
        a("ds_write_b128 v9, %s offset:%d" % (vr(32 + 4 * kk, 4), kk * 1024))
    a.label("ffn1_noln")
    a("s_waitcnt vmcnt(0) lgkmcnt(0)")
    a("s_barrier")
    for kk in range(16):
        for tt in range(2):
            a("ds_read_b128 %s, v4 offset:%d" % (vr(32 + (kk * 2 + tt) * 4, 4) if kk < 8 else vr(128 + ((kk - 8) * 2 + tt) * 4, 4), tt * 16384 + kk * 1024))
    for kk in range(16):
        a("s_waitcnt lgkmcnt(%d)" % min(15, 2 * (15 - kk)))
        for tt in range(2):
            x = vr(32 + (kk * 2 + tt) * 4, 4) if kk < 8 else vr(128 + ((kk - 8) * 2 + tt) * 4, 4)
            for j in range(4):
                d = vr(96 + (tt * 4 + j) * 4, 4)
                mfma(a, d, ar((kk * 4 + j) * 4, 4), x, "0" if kk == 0 else d)
    a.nop(8)
    a("s_lshl_b32 s17, s4, 3")
    a("s_lshl_b32 s18, s10, 1")
    a("s_add_u32 s17, s17, s18")
    a("s_mul_i32 s17, s17, %d" % (56 * 1024))
    a("s_lshl_b32 s18, s12, 9")
    a("s_add_u32 s17, s17, s18")
    a("s_add_u32 s17, s17, %d" % ACT_F)
    for tt in range(2):
        b = 96 + tt * 16
        for i in range(16):
            round_bf16(a, b + i, b + i)
        for i in range(8):
            a("v_mul_f32 v%d, v%d, v%d" % (b + i, b + i, b + 8 + i))
        d = 32 + tt * 4
        for i in range(4):
            a("v_cvt_pk_bf16_f32 v%d, v%d, v%d" % (d + i, b + 2 * i, b + 1 + 2 * i))
        a("buffer_store_dwordx4 %s, v4, s[40:43], s17 offen %s" % (vr(d, 4), WT))
        a("s_add_u32 s17, s17, %d" % (56 * 1024))
    signal_counter(a, 4, C_F1)


N_T1 = 768
PER_TB = 344
N_TASK = N_T1 + 19 * PER_TB
LDS_BCAST = 163840 - 64


def gen_worker(a):
    a.label("worker_start")
    a("s_load_dwordx2 s[24:25], s[0:1], %d" % KA_X)
    a("s_load_dwordx2 s[26:27], s[0:1], %d" % KA_OUT)
    a("s_waitcnt lgkmcnt(0)")
    srd(a, 44, 24, 2048 * 512 * 2)
    srd(a, 52, 26, 2048 * 512 * 2)
    a("s_mov_b32 s90, -1")
    a("v_add_u32 v5, 0x10000, v4")
    a.label("worker_loop")
    a("v_mov_b32 v18, %d" % LDS_BCAST)
    a("s_cmp_eq_u32 s3, 0")
    a("s_cbranch_scc0 worker_t1")
    a("v_mov_b32 v16, 1")
    a("v_mov_b32 v17, 0")
    a("s_mov_b32 s80, %d" % (CNT + 64 * C_QUEUE))
    a("s_mov_b64 exec, 1")
    a("buffer_atomic_add v16, v17, s[40:43], s80 offen sc0")
    a("s_waitcnt vmcnt(0)")
    a("ds_write_b32 v18, v16")
    a("s_waitcnt lgkmcnt(0)")
    a("s_mov_b64 exec, -1")
    a.label("worker_t1")
    a("s_barrier")
    a("ds_read_b32 v16, v18")
    a("s_waitcnt lgkmcnt(0)")
    a("v_readfirstlane_b32 s91, v16")
    a("s_barrier")
    a("s_cmp_ge_u32 s91, %d" % N_TASK)
    a("s_cbranch_scc1 worker_fin")
    a("s_cmp_ge_u32 s91, %d" % N_T1)
    a("s_cbranch_scc1 worker_stage")
    a("s_mul_hi_u32 s4, s91, %d" % ((1 << 32) // 48 + 1))
    a("s_mul_i32 s5, s4, 48")
    a("s_sub_u32 s5, s91, s5")
    a("s_add_u32 s11, s5, 16")
    a("s_cmp_ge_u32 s11, 48")
    a("s_cselect_b32 s5, 48, 0")
    a("s_sub_u32 s11, s11, s5")
    body_qkv(a)
    a("s_branch worker_loop")
    a.label("worker_stage")
    a("s_sub_u32 s5, s91, %d" % N_T1)
    a("s_mul_hi_u32 s4, s5, %d" % ((1 << 32) // PER_TB + 1))
    a("s_mul_i32 s6, s4, %d" % PER_TB)
    a("s_sub_u32 s5, s5, s6")
    a("s_cmp_ge_u32 s5, 128")
    a("s_cbranch_scc1 worker_s4")
    a("s_sub_u32 s4, s4, 1")
    a("s_cmp_ge_u32 s4, 16")
    a("s_cbranch_scc1 worker_loop")
    body_splitk(a, "wo", 128, O_F, WO_F, True)
    tl15(a, 6)
    a("s_branch worker_loop")
    a.label("worker_s4")
    a("s_sub_u32 s5, s5, 128")
    a("s_cmp_ge_u32 s5, 56")
    a("s_cbranch_scc1 worker_s5")
    a("s_sub_u32 s4, s4, 2")
    a("s_cmp_ge_u32 s4, 16")
    a("s_cbranch_scc1 worker_loop")
    body_ffn1(a)
    tl15(a, 7)
    a("s_branch worker_loop")
    a.label("worker_s5")
    a("s_sub_u32 s5, s5, 56")
    a("s_cmp_ge_u32 s5, 128")
    a("s_cbranch_scc1 worker_s2")
    a("s_sub_u32 s4, s4, 3")
    a("s_cmp_ge_u32 s4, 16")
    a("s_cbranch_scc1 worker_loop")
    body_splitk(a, "f2", 56, ACT_F, WD_F, False)
    tl15(a, 8)
    a("s_branch worker_loop")
    a.label("worker_s2")
    a("s_sub_u32 s5, s5, 128")
    a("s_cmp_ge_u32 s4, 16")
    a("s_cbranch_scc1 worker_loop")
    body_attn(a)
    tl15(a, 5)
    a("s_branch worker_loop")
    a.label("worker_fin")
    tl(a, 3)
    a("s_endpgm")


def main():
    a = A()
    hdr = []
    ref = open("cdna_kernels/%s.s.ref" % NAME).read().split("\n")
    for l in ref:
        if l.startswith("; @launch") or l.startswith("; Override") or l.startswith("; grid="):
            continue
        if l.startswith(";"):
            hdr.append(l)
        else:
            break
    launches = [
        ("prep_kernel", (N_PREP + 3) // 4, PREP_LDS),
        ("rec_kernel", 256, REC_LDS),
    ]
    for n, g, lds in launches:
        hdr.append("; @launch kernel=%s grid=(%d,1,1) block=(256,1,1) lds=%d" % (n, g, lds))
    kds = []
    kds.append(gen_prep(a))
    kds.append(gen_rec(a))
    gen_worker(a)
    out = "\n".join(hdr) + "\n"
    out += '.amdgcn_target "amdgcn-amd-amdhsa--gfx950"\n.text\n'
    out += a.text()
    out += '.section .rodata,"a"\n'
    for k in kds:
        out += ".p2align 6\n" + k
    path = sys.argv[1] if len(sys.argv) > 1 else "cdna_kernels/%s.s" % NAME
    open(path, "w").write(out)
    print("wrote", path, len(out), "bytes")


main()
```
